```python
import torch

def _softmax(x, axis=-1):
    return torch.softmax(x, dim=axis)

def _gelu(x):
    return torch.nn.functional.gelu(x, approximate='tanh')

def _silu(x):
    return torch.nn.functional.silu(x)

def _sigmoid(x):
    return torch.sigmoid(x)

def _layernorm(x, axis=-1, eps=1e-05):
    m = x.mean(dim=axis, keepdim=True)
    v = x.var(dim=axis, keepdim=True, unbiased=False)
    return (x - m) / torch.sqrt(v + eps)

def _scatter_add(tgt, idx, src, axis=0):
    return tgt.clone().index_add_(axis, idx, src)

def _segment_sum(src, seg, n):
    out = torch.zeros((n,) + src.shape[1:], dtype=src.dtype)
    return out.index_add_(0, seg, src)

def _pad(x, pw):
    flat = tuple((v for pair in reversed(pw) for v in pair))
    return torch.nn.functional.pad(x, flat)
kernel_name = 'interleave_layers__memory_aug_recurrent_mem_tr__spectral_gfnet__prompt'

def setup_inputs():

    _w = lambda a: (lambda t: t.to(torch.bfloat16) if t.is_floating_point() else t)(torch.as_tensor(a))

    def _A_setup():
        B, S, Dm = (1, 2048, 512)
        H, Dh = (32, 128)
        M, seg = (8, 32)
        seg = min(seg, S)
        S = S // seg * seg
        return {'x': _w((lambda *s: torch.randn(*s, dtype=torch.bfloat16) * 0.05)(B, S, Dm)), 'mem0': _w((lambda *s: torch.randn(*s, dtype=torch.bfloat16) * 0.2)(B, M, Dm)), 'Wq': _w((lambda *s: torch.randn(*s, dtype=torch.bfloat16) * 1.6)(Dm, H, Dh) * Dm ** (-0.5)), 'Wk': _w((lambda *s: torch.randn(*s, dtype=torch.bfloat16) * 1.6)(Dm, H, Dh) * Dm ** (-0.5)), 'Wv': _w((lambda *s: torch.randn(*s, dtype=torch.bfloat16) * 0.2)(Dm, H, Dh) * Dm ** (-0.5)), 'Wo': _w((lambda *s: torch.randn(*s, dtype=torch.bfloat16) * 0.2)(H, Dh, Dm) * (H * Dh) ** (-0.5)), 'seg_len': seg}
    _A_in = _A_setup()

    def _B_setup():
        B, S, D = (1, 2048, 512)
        Df = D // 2 + 1
        return {'x': _w((lambda *s: torch.randn(*s, dtype=torch.bfloat16) * 0.05)(B, S, D)), 'w_r': _w((lambda *s: torch.randn(*s, dtype=torch.bfloat16) * 0.4)(S, Df) * 0.02), 'w_i': _w((lambda *s: torch.randn(*s, dtype=torch.bfloat16) * 0.4)(S, Df) * 0.02)}
    _B_in = _B_setup()
    return {'A_x': _A_in['x'], 'A_mem0': _A_in['mem0'], 'A_Wq': _A_in['Wq'], 'A_Wk': _A_in['Wk'], 'A_Wv': _A_in['Wv'], 'A_Wo': _A_in['Wo'], 'A_seg_len': _A_in['seg_len'], 'B_x': _B_in['x'], 'B_w_r': _B_in['w_r'], 'B_w_i': _B_in['w_i']}

def reference(A_x, A_mem0, A_Wq, A_Wk, A_Wv, A_Wo, A_seg_len, B_x, B_w_r, B_w_i):

    def _A_ref(x, mem0, Wq, Wk, Wv, Wo, seg_len):
        B, S, Dm = x.shape
        H, Dh = (Wq.shape[1], Wq.shape[2])
        M = mem0.shape[1]
        scale = Dh ** (-0.5)
        n_seg = S // seg_len
        L = M + seg_len
        idx = torch.arange(L)
        mask = (idx[:, None] < M) | (idx[:, None] >= idx[None, :])
        mem = mem0
        outs = []
        for s in range(n_seg):
            xs = x[:, s * seg_len:(s + 1) * seg_len, :].clone()
            h = torch.concatenate([mem, xs], axis=1)
            q = torch.einsum('btd,dhe->bhte', h, Wq)
            k = torch.einsum('btd,dhe->bhte', h, Wk)
            v = torch.einsum('btd,dhe->bhte', h, Wv)
            scores = torch.einsum('bhqe,bhke->bhqk', q, k) * scale
            scores = torch.where(mask[None, None], scores, -1000000000.0)
            p = _softmax(scores, axis=-1)
            o = torch.einsum('bhqk,bhke->bhqe', p, v)
            o = torch.einsum('bhte,hed->btd', o, Wo)
            mem = o[:, :M, :].clone()
            outs.append(o[:, M:, :])
        return torch.concatenate(outs, axis=1)

    def _B_ref(x, w_r, w_i):
        B, S, D = x.shape
        X = (lambda x, axes=(-2, -1): torch.fft.rfft2(x.float(), dim=axes))(x, axes=(-2, -1))
        W = w_r + 1j * w_i
        X = X * W
        y = (lambda x, s, axes=(-2, -1): torch.fft.irfft2(x, s=s, dim=axes).to(torch.bfloat16))(X, (S, D), axes=(-2, -1))
        return y
    x = A_x
    x = x + _A_ref(_layernorm(x, axis=-1), A_mem0, A_Wq, A_Wk, A_Wv, A_Wo, A_seg_len)
    x = x + _B_ref(_layernorm(x, axis=-1), B_w_r, B_w_i)
    x = x + _A_ref(_layernorm(x, axis=-1), A_mem0, A_Wq, A_Wk, A_Wv, A_Wo, A_seg_len)
    x = x + _B_ref(_layernorm(x, axis=-1), B_w_r, B_w_i)
    return x
```

```python
import re

def vr(b, n=1):
    return f"v{b}" if n == 1 else f"v[{b}:{b+n-1}]"
def ar(b, n=1):
    return f"a{b}" if n == 1 else f"a[{b}:{b+n-1}]"
def sr(b, n=1):
    return f"s{b}" if n == 1 else f"s[{b}:{b+n-1}]"
def ur(u, n=1):
    return vr(u, n) if u < 256 else ar(u - 256, n)

_REG = re.compile(r"^(-|abs\()?([vas])(?:(\d+)|\[(\d+):(\d+)\])\)?$")
def regs_of(op):
    op = op.strip()
    if op in ("vcc",): return {("s", 106), ("s", 107)}
    if op == "vcc_lo": return {("s", 106)}
    if op == "vcc_hi": return {("s", 107)}
    if op == "exec": return {("s", 126), ("s", 127)}
    if op == "m0": return {("s", 124)}
    m = _REG.match(op)
    if not m: return set()
    k = m.group(2)
    if m.group(3) is not None: lo = hi = int(m.group(3))
    else: lo, hi = int(m.group(4)), int(m.group(5))
    if k == "a": return {("v", 256 + i) for i in range(lo, hi + 1)}
    return {(k, i) for i in range(lo, hi + 1)}

TRANS = ("v_exp_f32", "v_log_f32", "v_rcp_f32", "v_rsq_f32", "v_sqrt_f32", "v_sin_f32", "v_cos_f32")

class Ins:
    __slots__ = ("text", "mn", "ops", "kind", "dst", "src", "srcC", "passes", "states", "mods")
    def __init__(self, text):
        self.text = text
        t = text.split(";")[0].strip()
        parts = t.split(None, 1)
        self.mn = parts[0]
        rest = parts[1] if len(parts) > 1 else ""
        toks = [x.strip() for x in rest.split(",")] if rest else []
        ops = []
        mods = ""
        for i, tk in enumerate(toks):
            sp = tk.split()
            if not sp: continue
            ops.append(sp[0])
            if len(sp) > 1: mods += " " + " ".join(sp[1:])
        self.ops = ops; self.mods = mods
        mn = self.mn
        self.dst = set(); self.src = set(); self.srcC = set(); self.passes = 0; self.states = 1
        R = [regs_of(o) for o in ops]
        if mn.startswith("v_mfma") or mn.startswith("v_smfmac"):
            self.kind = "mfma"
            self.dst = R[0]
            self.src = R[1] | R[2]
            if mn.startswith("v_smfmac"):
                self.srcC = R[0]; self.src |= R[3]
            else:
                self.srcC = R[3]
            self.passes = 8 if "32x32" in mn else 4
        elif mn.startswith("v_"):
            self.kind = "valu"
            if mn.startswith("v_cmp"):
                self.dst = R[0]; self.src = set().union(*R[1:])
            elif mn.startswith("v_readfirstlane") or mn.startswith("v_readlane"):
                self.dst = R[0]; self.src = set().union(*R[1:])
            elif mn.startswith("v_permlane") or mn.startswith("v_swap"):
                self.dst = R[0] | R[1]; self.src = R[0] | R[1]
            elif "_co_" in mn:
                self.dst = R[0] | R[1]; self.src = set().union(*R[2:])
            else:
                self.dst = R[0]; self.src = set().union(*R[1:]) if len(R) > 1 else set()
                if mn.startswith(("v_fmac", "v_mac", "v_pk_fmac", "v_writelane", "v_dot2c")) or "_dpp" in mn or "dpp" in mods or "row_" in mods or "quad_perm" in mods:
                    self.src |= R[0]
                if mn.startswith("v_cndmask") and len(ops) == 3: self.src |= regs_of("vcc")
        elif mn.startswith(("buffer_", "global_", "flat_")):
            self.kind = "vmem"
            if "_lds" in mn or " lds" in (" " + mods + " ").replace("  ", " ") and "lds" in mods.split():
                self.src = set().union(*R) | regs_of("m0")
                self.kind = "vmem_lds"
            elif "store" in mn or ("atomic" in mn and "sc0" not in mods.split()):
                self.src = set().union(*R)
            elif mn.startswith(("buffer_wbl2", "buffer_inv")):
                pass
            else:
                self.dst = R[0]; self.src = set().union(*R[1:])
                if mn.startswith("buffer_atomic"): self.src |= R[0]
        elif mn.startswith("ds_"):
            self.kind = "ds"
            if mn.startswith(("ds_write", "ds_add", "ds_pk_add", "ds_max", "ds_min")) and "rtn" not in mn:
                self.src = set().union(*R)
            else:
                self.dst = R[0]; self.src = set().union(*R[1:])
                if "d16" in mn: self.src |= R[0]
        elif mn.startswith("s_"):
            self.kind = "salu"
            if mn == "s_nop":
                self.states = int(ops[0], 0) + 1
            elif mn.startswith(("s_cmp", "s_bitcmp", "s_cbranch", "s_branch", "s_waitcnt", "s_barrier", "s_endpgm", "s_sleep", "s_setprio")):
                self.src = set().union(*R) if R else set()
            else:
                self.dst = R[0] if R else set(); self.src = set().union(*R[1:]) if len(R) > 1 else set()
                if "saveexec" in mn: self.dst |= regs_of("exec")
        else:
            raise ValueError("unknown instruction: " + text)

def need_states(p, c):
    n = 0
    vdst = {r for r in p.dst if r[0] == "v"}
    sdst = {r for r in p.dst if r[0] == "s"}
    if p.kind == "valu":
        if c.kind == "mfma" and vdst & (c.src | c.srcC): n = max(n, 2)
        if c.kind == "valu":
            if p.mn.startswith(TRANS) and not c.mn.startswith(TRANS) and vdst & (c.src | c.dst): n = max(n, 1)
            if c.mn.startswith("v_permlane") and vdst & c.src: n = max(n, 2)
            if ("dpp" in c.mn or "row_" in c.mods or "quad_perm" in c.mods) and vdst & c.src: n = max(n, 2)
            if c.mn.startswith(("v_readlane", "v_readfirstlane")) and vdst & c.src: n = max(n, 1)
            if sdst & c.src: n = max(n, 4 if c.mn.startswith(("v_readlane", "v_writelane")) else 2)
            if ("op_sel" in p.mods or "sdwa" in p.mn) and vdst & (c.src | c.dst): n = max(n, 1)
        if c.kind in ("vmem", "vmem_lds") and sdst & c.src: n = max(n, 5)
        if c.kind == "salu" and sdst & c.src and not c.mn.startswith("s_cbranch"): n = max(n, 4)
    if p.kind == "mfma":
        big = p.passes == 8
        if c.kind == "mfma":
            if vdst & c.src: n = max(n, 12 if big else 8)
            if vdst & c.srcC:
                if not (c.srcC == vdst and c.mn == p.mn): n = max(n, 10 if big else 6)
            elif vdst & c.dst: n = max(n, 12 if big else 8)
        else:
            if vdst & (c.src | c.dst): n = max(n, 12 if big else 8)
        if c.kind == "valu" and p.srcC & c.dst: n = max(n, 7 if big else 3)
        if c.kind in ("ds", "vmem") and p.srcC & c.dst: n = max(n, 7 if big else 3)
    if p.kind == "salu":
        if ("s", 124) in sdst and c.kind == "vmem_lds": n = max(n, 1)
    if p.kind == "vmem" and ("store" in p.mn or "atomic" in p.mn) and ("x3" in p.mn or "x4" in p.mn):
        data = regs_of(p.ops[0]) if p.mn.startswith("buffer") else regs_of(p.ops[1])
        if data & c.dst: n = max(n, 2 if c.kind == "valu" else 1)
    return n

MEM_ZERO = False
class Asm:
    def __init__(self):
        self.lines = []
        self._lab = 0
    def __call__(self, text):
        for ln in text.split("\n"):
            ln = ln.strip()
            if ln: self.lines.append(ln)
    def label(self, name):
        self.lines.append(name + ":")
    def newlabel(self, base="L"):
        self._lab += 1
        return f"{base}_{self._lab}"
    def extend(self, other):
        self.lines.extend(other.lines)

def pad_hazards(lines, verbose=False):
    items = []
    for ln in lines:
        s = ln.split(";")[0].strip()
        if not s: items.append(("c", ln)); continue
        if s.endswith(":"): items.append(("l", s[:-1])); continue
        if s.startswith("."): items.append(("d", ln)); continue
        items.append(("i", Ins(ln)))
    WIN = 20
    inserted = 0
    changed = True
    it = 0
    while changed:
        changed = False; it += 1
        labels = {v: i for i, (k, v) in enumerate(items) if k == "l"}
        preds = {}
        for i, (k, v) in enumerate(items):
            if k == "i" and v.mn.startswith(("s_cbranch", "s_branch")):
                tgt = v.ops[0]
                if tgt in labels: preds.setdefault(labels[tgt], []).append(i)
        i = 0
        while i < len(items):
            k, c = items[i]
            if k != "i" or c.mn == "s_nop" or c.kind == "salu" and not c.src:
                i += 1; continue
            need = 0
            stack = [(i - 1, 0, None, 0)]
            seen = set()
            while stack:
                j, d, aft, acc = stack.pop()
                while j >= 0 and d < WIN:
                    if (j, d, aft, acc) in seen: break
                    seen.add((j, d, aft, acc))
                    kk, p = items[j]
                    if kk == "l":
                        for b in preds.get(j, []): stack.append((b, d, aft, acc))
                    elif kk == "i":
                        n = need_states(p, c)
                        dd = d
                        if p.kind == "mfma" and aft is not None:
                            dd = max(d, acc + aft)
                        if n > dd: need = max(need, n - dd)
                        if p.kind == "mfma":
                            if aft is None: aft = d
                            else: acc += p.passes
                        d += p.states if (p.kind not in ("ds", "vmem", "vmem_lds") or not MEM_ZERO) else 0
                    j -= 1
            if need > 0:
                items.insert(i, ("i", Ins(f"s_nop {need - 1}")))
                inserted += 1
                changed = True
                break_all = True
                labels = {v: ii for ii, (k2, v) in enumerate(items) if k2 == "l"}
                preds = {}
                for ii, (k2, v) in enumerate(items):
                    if k2 == "i" and v.mn.startswith(("s_cbranch", "s_branch")):
                        tgt = v.ops[0]
                        if tgt in labels: preds.setdefault(labels[tgt], []).append(ii)
                i += 2
                continue
            i += 1
        if it > 6: break
    out = []
    for k, v in items:
        if k == "l": out.append(v + ":")
        elif k == "i": out.append("  " + v.text)
        else: out.append(v)
    if verbose: print("hazard nops inserted:", inserted)
    return out
```

```python
from asmlib import *
from layout import *

S_KARG = 0
S_W = 4
S_H = 5
S_WS = 8
S_WT = 12
S_STEP = 16
S_LAYER = 17
S_PAR = 18
S_H1LD = 19
S_H1LD2 = 20
S_H2LD = 21
S_H1ST2 = 22
S_KXN = 23
S_VXC = 24
S_TCH = 25
S_PUB = 26
S_T0 = 27; S_T1 = 28; S_T2 = 29
S_RDY = 30
S_M0 = 32
S_M1 = 34
S_M8 = 36
S_CSC = 6
S_XM0 = 38
S_XOFF = 80
S_TO = 39
S_FKV = 40
S_FKM = 41
S_TM = 42
S_DBG = 60
S_LDSK = 62
S_LDSV = 63
S_TMP2 = 72

V_IDX = 1; V_H1ST = 2; V_LIN = 3; V_H2ST = 4
V_LM = 5
V_QW = 9; V_KXA = 10; V_QR = 11; V_KW = 12; V_LU = 13; V_OW = 14; V_VW = 15; V_PUB = 16; V_TCH = 17; V_JUNK = 18; V_TAGM = 0; V_T = 19
V_VX = 20; V_PM = 28; V_SEL = 30; V_VM0 = 32; V_VM1 = 34
V_P0X = 20
V_MF = 36
V_ACC = 68
V_X = 92
NL = 8
L_KX = 0
L_M = L_KX + 16384
L_KE = L_M + 8192
L_QE = L_KE + 4096
L_OE = L_QE + 2048
L_UNITS = L_OE + 2048
L_END = L_UNITS + 4 * NL * 4096

LDS_CHUNKS = [("Q", 0), ("K", 0), ("V", 1), ("K", 2), ("K", 3), ("O", 0), ("O", 6), ("O", 7)]
ALL_CHUNKS = [("Q", p) for p in range(8)] + [("K", p) for p in range(8)] + [("V", p) for p in range(8)] + [("O", i) for i in range(8)]
RES_CHUNKS = [c for c in ALL_CHUNKS if c not in LDS_CHUNKS]
UNIT_REG = {}
_r = 128
for c in RES_CHUNKS:
    UNIT_REG[c] = _r; _r += 16
assert _r == 512
def lds_off(c): return LDS_CHUNKS.index(c) * 4096

def smf(acc, a, b):
    return f"v_smfmac_f32_16x16x64_bf16 {vr(acc,4)}, {ur(a,4)}, {ur(b,8)}, {vr(V_IDX)}"
def mfma32(d, a, b, c):
    return f"v_mfma_f32_16x16x32_bf16 {vr(d,4)}, {ur(a,4)}, {ur(b,4)}, {c if isinstance(c,str) else vr(c,4)}"
def mfma16(d, a, b, c):
    return f"v_mfma_f32_16x16x16_bf16 {vr(d,4)}, {ur(a,2)}, {ur(b,2)}, {c if isinstance(c,str) else vr(c,4)}"

def fine(a, start, dbg, prefix, every):
    if not dbg or prefix not in dbg: return
    body = a.lines[start:]; del a.lines[start:]
    n = 0
    for i, ln in enumerate(body):
        a.lines.append(ln)
        if (i + 1) % every == 0:
            nm = f"{prefix}{i+1}"
            STAMPS.append(nm)
            a.lines.append(f"s_memtime {sr(STAMP_REGS[len(STAMPS)-1], 2)}")

def interleave(main, fill):
    out = []
    for i, m in enumerate(main):
        out.append(m)
        out.extend(fill.get(i, []))
    return out

def srd(a, base, karg_off, size):
    a(f"s_load_dwordx2 {sr(base,2)}, {sr(S_KARG,2)}, {karg_off}")
    a("s_waitcnt lgkmcnt(0)")
    a(f"s_mov_b32 {sr(base+2)}, {size}")
    a(f"s_mov_b32 {sr(base+3)}, 0x20000")

def prologue(a):
    L, G, C, T1, T2 = V_X, V_X+1, V_X+2, V_X+3, V_X+4
    a(f"v_and_b32 {vr(L)}, 63, v0")
    a(f"v_lshrrev_b32 {vr(G)}, 4, {vr(L)}")
    a(f"v_and_b32 {vr(C)}, 15, {vr(L)}")
    a(f"v_lshlrev_b32 {vr(V_LIN)}, 4, {vr(L)}")
    a(f"v_lshlrev_b32 {vr(V_TCH)}, {TCH_SH}, {vr(L)}")
    if TCH_SH == 7:
        a(f"s_cmp_lt_u32 {sr(S_W)}, 2")
        a(f"s_cselect_b32 {sr(S_T0)}, 0x20000000, 0")
    else:
        a(f"s_lshr_b32 {sr(S_T0)}, {sr(S_W)}, 1")
        a(f"s_lshl_b32 {sr(S_T0)}, {sr(S_T0)}, 12")
    a(f"v_add_u32 {vr(V_TCH)}, {sr(S_T0)}, {vr(V_TCH)}")
    a(f"v_bfe_u32 {vr(T1)}, {vr(C)}, 1, 1")
    a(f"v_mov_b32 {vr(T2)}, 0xaaaaaaaa")
    a(f"v_mul_lo_u32 {vr(T1)}, {vr(T1)}, {vr(T2)}")
    a(f"v_add_u32 {vr(V_IDX)}, 0x44444444, {vr(T1)}")
    a(f"s_mov_b32 {sr(S_M0)}, 0x33333333"); a(f"s_mov_b32 {sr(S_M0+1)}, 0x33333333")
    a(f"s_mov_b32 {sr(S_M1)}, 0xcccccccc"); a(f"s_mov_b32 {sr(S_M1+1)}, 0xcccccccc")
    a(f"s_mov_b32 {sr(S_M8)}, 0x00ff00ff"); a(f"s_mov_b32 {sr(S_M8+1)}, 0")
    a(f"s_mov_b32 {sr(S_M0)}, 0xf0f0f0f0"); a(f"s_mov_b32 {sr(S_M0+1)}, 0xf0f0f0f0")
    a(f"v_lshrrev_b32 {vr(T1)}, 2, {vr(C)}")
    a(f"s_lshl_b32 {sr(S_T0)}, {sr(S_W)}, 3")
    a(f"v_add_u32 {vr(T1)}, {sr(S_T0)}, {vr(T1)}")
    a(f"v_lshlrev_b32 {vr(T1)}, 13, {vr(T1)}")
    a(f"s_lshl_b32 {sr(S_T0)}, {sr(S_H)}, 6")
    a(f"v_add_u32 {vr(T1)}, {sr(S_T0)}, {vr(T1)}")
    a(f"v_and_b32 {vr(T2)}, 3, {vr(C)}")
    a(f"v_lshl_add_u32 {vr(T1)}, {vr(T2)}, 4, {vr(T1)}")
    a(f"v_lshl_add_u32 {vr(V_H1ST)}, {vr(G)}, 11, {vr(T1)}")
    a(f"s_mov_b32 {sr(S_H1ST2)}, {OFF_H1 + 4*8192}")
    a(f"s_lshl_b32 {sr(S_H1LD)}, {sr(S_H)}, 13")
    a(f"s_lshl_b32 {sr(S_T1)}, {sr(S_W)}, 11")
    a(f"s_add_u32 {sr(S_H1LD2)}, {sr(S_H1LD)}, {sr(S_T1)}")
    a(f"s_lshl_b32 {sr(S_H2LD)}, {sr(S_W)}, 11")
    a(f"s_add_u32 {sr(S_H2LD)}, {sr(S_H2LD)}, {OFF_H2}")
    a(f"v_lshlrev_b32 {vr(T1)}, 5, {vr(G)}")
    a(f"v_lshl_add_u32 {vr(T1)}, {vr(C)}, 2, {vr(T1)}")
    a(f"s_lshl_b32 {sr(S_T0)}, {sr(S_H)}, 8")
    a(f"s_lshl_b32 {sr(S_T1)}, {sr(S_W)}, 6")
    a(f"s_add_u32 {sr(S_T0)}, {sr(S_T0)}, {sr(S_T1)}")
    a(f"s_add_u32 {sr(S_T0)}, {sr(S_T0)}, {OFF_H2}")
    a(f"v_add_u32 {vr(V_H2ST)}, {sr(S_T0)}, {vr(T1)}")
    a(f"v_and_b32 {vr(T2)}, 3, {vr(C)}")
    a(f"v_cmp_eq_u32 vcc, 3, {vr(T2)}")
    a(f"v_cndmask_b32 {vr(V_TAGM)}, 0, 1, vcc")
    for q in range(4):
        a(f"s_add_u32 {sr(S_T0)}, {sr(S_W)}, {q}")
        a(f"s_and_b32 {sr(S_T0)}, {sr(S_T0)}, 3")
        a(f"s_lshl_b32 {sr(S_T0)}, {sr(S_T0)}, 11")
        a(f"s_add_u32 {sr(S_T0)}, {sr(S_T0)}, {L_M}")
        a(f"v_add_u32 {vr(V_LM+q)}, {sr(S_T0)}, {vr(V_LIN)}")
    a(f"s_lshl_b32 {sr(S_T0)}, {sr(S_W)}, 9")
    a(f"v_lshlrev_b32 {vr(T1)}, 7, {vr(G)}")
    a(f"v_lshl_add_u32 {vr(T1)}, {vr(C)}, 2, {vr(T1)}")
    a(f"v_add_u32 {vr(T1)}, {sr(S_T0)}, {vr(T1)}")
    a(f"v_add_u32 {vr(V_QW)}, {L_QE}, {vr(T1)}")
    a(f"v_add_u32 {vr(V_KW)}, {L_KE}, {vr(T1)}")
    a(f"v_lshrrev_b32 {vr(T1)}, 2, {vr(C)}")
    a(f"v_lshlrev_b32 {vr(T1)}, 7, {vr(T1)}")
    a(f"v_and_b32 {vr(T2)}, 1, {vr(C)}")
    a(f"v_lshl_add_u32 {vr(T1)}, {vr(T2)}, 6, {vr(T1)}")
    a(f"v_lshl_add_u32 {vr(T1)}, {vr(G)}, 4, {vr(T1)}")
    a(f"v_mov_b32 {vr(V_QR)}, {vr(T1)}")
    a(f"s_mul_i32 {sr(S_T0)}, {sr(S_W)}, {NL*4096}")
    a(f"s_add_u32 {sr(S_T0)}, {sr(S_T0)}, {L_UNITS}")
    a(f"v_add_u32 {vr(V_LU)}, {sr(S_T0)}, {vr(V_LIN)}")
    a(f"s_lshr_b32 {sr(S_T1)}, {sr(S_W)}, 1")
    a(f"s_lshl_b32 {sr(S_T1)}, {sr(S_T1)}, 10")
    a(f"s_and_b32 {sr(S_T2)}, {sr(S_W)}, 1")
    a(f"s_lshl_b32 {sr(S_T2)}, {sr(S_T2)}, 3")
    a(f"s_add_u32 {sr(S_T1)}, {sr(S_T1)}, {sr(S_T2)}")
    a(f"s_add_u32 {sr(S_T1)}, {sr(S_T1)}, {L_OE}")
    a(f"v_add_u32 {vr(V_OW)}, {sr(S_T1)}, {vr(V_LIN)}")
    a(f"s_lshl_b32 {sr(S_T1)}, {sr(S_W)}, 9")
    a(f"s_add_u32 {sr(S_T1)}, {sr(S_T1)}, {L_KE + 2048}")
    a(f"v_lshlrev_b32 {vr(T1)}, 4, {vr(C)}")
    a(f"v_lshl_add_u32 {vr(T1)}, {vr(G)}, 2, {vr(T1)}")
    a(f"v_add_u32 {vr(V_VW)}, {sr(S_T1)}, {vr(T1)}")
    a(f"s_lshl_b32 {sr(S_T1)}, {sr(S_W)}, 10")
    a(f"s_add_u32 {sr(S_T2)}, {sr(S_T1)}, {L_KE}")
    a(f"v_add_u32 {vr(V_PUB)}, {sr(S_T2)}, {vr(V_LIN)}")
    a(f"s_lshl_b32 {sr(S_LDSK)}, {sr(S_W)}, 11")
    a(f"s_add_u32 {sr(S_LDSK)}, {sr(S_LDSK)}, {L_KX}")
    for r in range(V_P0X, V_MF): a(f"v_mov_b32 {vr(r)}, 0")
    a(f"v_and_b32 {vr(T1)}, 1, {vr(C)}")
    a(f"v_lshlrev_b32 {vr(T1)}, 4, {vr(T1)}")
    a(f"v_mov_b32 {vr(V_SEL)}, 0x3f80")
    a(f"v_lshlrev_b32 {vr(V_SEL)}, {vr(T1)}, {vr(V_SEL)}")
    a(f"v_lshrrev_b32 {vr(V_SEL+1)}, 1, {vr(C)}")
    a(f"s_mov_b32 {sr(S_CSC)}, {hex(f32bits(128 ** -0.5 * 1.4426950408889634))}")
    a(f"s_mov_b32 {sr(S_CSC+1)}, {sr(S_CSC)}")
    Z = V_X + 8
    for i in range(4): a(f"v_mov_b32 {vr(Z+i)}, 0")
    a(f"buffer_store_dwordx4 {vr(Z,4)}, {vr(V_LIN)}, {sr(S_WS,4)}, {sr(S_H1LD2)} offen sc1")
    a(f"buffer_store_dwordx4 {vr(Z,4)}, {vr(V_LIN)}, {sr(S_WS,4)}, {sr(S_H1LD2)} offen offset:1024 sc1")
    a(f"s_mov_b64 exec, {sr(S_M8,2)}")
    a(f"buffer_store_dword {vr(Z)}, {vr(V_H2ST)}, {sr(S_WS,4)}, 0 offen sc1")
    a("s_mov_b64 exec, -1")

def load_weights(a):
    L, T1, T2 = V_X, V_X+3, V_X+4
    VSRC_QKV, VSRC_O, VTR, TMP = V_X+5, V_X+6, V_X+7, V_MF
    a(f"v_lshrrev_b32 {vr(T1)}, 2, {vr(L)}")
    a(f"v_and_b32 {vr(T2)}, 3, {vr(L)}")
    a(f"v_lshlrev_b32 {vr(VSRC_QKV)}, 13, {vr(T1)}")
    a(f"v_lshl_add_u32 {vr(VSRC_QKV)}, {vr(T2)}, 4, {vr(VSRC_QKV)}")
    a(f"s_lshl_b32 {sr(S_T0)}, {sr(S_H)}, 8")
    a(f"s_lshl_b32 {sr(S_T1)}, {sr(S_W)}, 6")
    a(f"s_add_u32 {sr(S_T0)}, {sr(S_T0)}, {sr(S_T1)}")
    a(f"v_add_u32 {vr(VSRC_QKV)}, {sr(S_T0)}, {vr(VSRC_QKV)}")
    a(f"v_lshlrev_b32 {vr(VSRC_O)}, 10, {vr(T1)}")
    a(f"v_lshl_add_u32 {vr(VSRC_O)}, {vr(T2)}, 4, {vr(VSRC_O)}")
    a(f"s_lshl_b32 {sr(S_T0)}, {sr(S_H)}, 17")
    a(f"s_lshl_b32 {sr(S_T1)}, {sr(S_W)}, 8")
    a(f"s_add_u32 {sr(S_T0)}, {sr(S_T0)}, {sr(S_T1)}")
    a(f"v_add_u32 {vr(VSRC_O)}, {sr(S_T0)}, {vr(VSRC_O)}")
    a(f"v_bfe_u32 {vr(T1)}, {vr(L)}, 3, 1")
    a(f"v_lshlrev_b32 {vr(VTR)}, 11, {vr(T1)}")
    a(f"v_bfe_u32 {vr(T1)}, {vr(L)}, 4, 1")
    a(f"v_lshl_add_u32 {vr(VTR)}, {vr(T1)}, 10, {vr(VTR)}")
    a(f"v_bfe_u32 {vr(T1)}, {vr(L)}, 5, 1")
    a(f"v_lshl_add_u32 {vr(VTR)}, {vr(T1)}, 8, {vr(VTR)}")
    a(f"v_bfe_u32 {vr(T1)}, {vr(L)}, 2, 1")
    a(f"v_lshl_add_u32 {vr(VTR)}, {vr(T1)}, 6, {vr(VTR)}")
    a(f"v_lshl_add_u32 {vr(VTR)}, {vr(T2)}, 3, {vr(VTR)}")
    a(f"s_mul_i32 {sr(S_T2)}, {sr(S_W)}, {NL*4096}")
    a(f"s_add_u32 {sr(S_T2)}, {sr(S_T2)}, {L_UNITS}")
    a(f"v_add_u32 {vr(VTR)}, {sr(S_T2)}, {vr(VTR)}")
    VTR2, VTRV = V_X + 8, V_X + 9
    a(f"v_bfe_u32 {vr(T1)}, {vr(L)}, 3, 1")
    a(f"v_lshlrev_b32 {vr(VTRV)}, 11, {vr(T1)}")
    a(f"v_bfe_u32 {vr(T1)}, {vr(L)}, 2, 1")
    a(f"v_lshl_add_u32 {vr(VTRV)}, {vr(T1)}, 10, {vr(VTRV)}")
    a(f"v_bfe_u32 {vr(T1)}, {vr(L)}, 5, 1")
    a(f"v_lshl_add_u32 {vr(VTRV)}, {vr(T1)}, 8, {vr(VTRV)}")
    a(f"v_bfe_u32 {vr(T1)}, {vr(L)}, 4, 1")
    a(f"v_lshl_add_u32 {vr(VTRV)}, {vr(T1)}, 7, {vr(VTRV)}")
    a(f"v_lshl_add_u32 {vr(VTRV)}, {vr(T2)}, 3, {vr(VTRV)}")
    a(f"v_add_u32 {vr(VTRV)}, {sr(S_T2)}, {vr(VTRV)}")
    a(f"v_lshl_add_u32 {vr(VTR2)}, {vr(T2)}, 3, {vr(VTRV)}")
    a(f"s_mov_b32 s80, 0x05040100")
    a(f"s_mov_b32 s81, 0x07060302")
    for i, off in enumerate((16, 24, 32, 40)):
        a(f"s_load_dwordx2 {sr(64+4*i,2)}, {sr(S_KARG,2)}, {off}")
    a("s_waitcnt lgkmcnt(0)")
    for i in range(4):
        a(f"s_mov_b32 {sr(66+4*i)}, 0x400000")
        a(f"s_mov_b32 {sr(67+4*i)}, 0x20000")
    order = RES_CHUNKS + LDS_CHUNKS
    assert len(RES_CHUNKS) % NL == 0
    def issue(n):
        mat, p = order[n]
        slot = n % NL
        sd = 64 + 4 * "QKVO".index(mat)
        if mat != "O":
            a(f"s_lshl_b32 {sr(S_T0)}, {sr(S_W)}, 1")
            a(f"s_add_u32 {sr(S_T0)}, {sr(S_T0)}, {p}")
            a(f"s_and_b32 {sr(S_T0)}, {sr(S_T0)}, 7")
            a(f"s_lshl_b32 {sr(S_T0)}, {sr(S_T0)}, 19")
        for i in range(4):
            a(f"s_add_u32 m0, {sr(S_T2)}, {slot*4096 + i*1024}")
            if mat != "O":
                a(f"s_add_u32 {sr(S_T1)}, {sr(S_T0)}, {i*16*8192}")
                a(f"buffer_load_dwordx4 {vr(VSRC_QKV)}, {sr(sd,4)}, {sr(S_T1)} offen lds")
            else:
                tp, kk2 = p >> 1, p & 1
                isw = ((i & 1) << 1) | (i >> 1)
                a(f"s_mov_b32 {sr(S_T1)}, {(64*kk2 + 16*isw)*1024 + tp*64}")
                a(f"buffer_load_dwordx4 {vr(VSRC_O)}, {sr(sd,4)}, {sr(S_T1)} offen lds")
    for n in range(NL - 1): issue(n)
    for n in range(32):
        c = order[n]; slot = n % NL
        if n + NL - 1 < 32: issue(n + NL - 1)
        left = min(32, n + NL) - (n + 1)
        a(f"s_waitcnt vmcnt({4*left})")
        dst = UNIT_REG.get(c, TMP)
        dei = c[0] in "QK"
        if dei:
            for i in range(4): a(f"ds_read_b128 {vr(TMP+4*i,4)}, {vr(V_LU)} offset:{slot*4096 + i*1024}")
            a("s_waitcnt lgkmcnt(0)")
            for i in range(4):
                b = TMP + 4*i; o = TMP + 16 + 4*i
                a(f"v_perm_b32 {vr(o)}, {vr(b+1)}, {vr(b)}, s80")
                a(f"v_perm_b32 {vr(o+1)}, {vr(b+3)}, {vr(b+2)}, s80")
                a(f"v_perm_b32 {vr(o+2)}, {vr(b+1)}, {vr(b)}, s81")
                a(f"v_perm_b32 {vr(o+3)}, {vr(b+3)}, {vr(b+2)}, s81")
                a(f"ds_write_b128 {vr(V_LU)}, {vr(o,4)} offset:{slot*4096 + i*1024}")
            a("s_waitcnt lgkmcnt(0)")
        for t in range(2):
            for x in range(4):
                a(f"ds_read_b64_tr_b16 {ur(dst + 8*t + 2*x, 2)}, {vr(VTR2 if dei else VTRV if c[0] == 'V' else VTR)} offset:{slot*4096 + (x>>1)*512 + (x&1)*(128 if c[0] == 'O' else 64) + t*(8 if dei else 32)}")
        a("s_waitcnt lgkmcnt(0)")
        if c not in UNIT_REG:
            assert slot * 4096 == lds_off(c)
            for i in range(4):
                a(f"ds_write_b128 {vr(V_LU)}, {vr(TMP+4*i,4)} offset:{slot*4096 + i*1024}")
            a("s_waitcnt lgkmcnt(0)")

import struct
def f32bits(x): return struct.unpack("<I", struct.pack("<f", x))[0]

def unit_reads(c, dst):
    return [f"ds_read_b128 {vr(dst+4*i,4)}, {vr(V_LU)} offset:{lds_off(c) + i*1024}" for i in range(4)]

def load_mem0(a):
    T1, T2, LN = V_X+32, V_X+33, V_X+34
    srd(a, S_WT, 8, 8192)
    a(f"v_lshrrev_b32 {vr(LN)}, 4, {vr(V_LIN)}")
    a(f"v_bfe_u32 {vr(T1)}, {vr(LN)}, 2, 2")
    a(f"v_lshlrev_b32 {vr(T1)}, 11, {vr(T1)}")
    a(f"v_and_b32 {vr(T2)}, 1, {vr(LN)}")
    a(f"v_lshl_add_u32 {vr(T1)}, {vr(T2)}, 10, {vr(T1)}")
    a(f"v_bfe_u32 {vr(T2)}, {vr(LN)}, 1, 1")
    a(f"v_lshl_add_u32 {vr(T1)}, {vr(T2)}, 6, {vr(T1)}")
    a(f"v_bfe_u32 {vr(T2)}, {vr(LN)}, 4, 2")
    a(f"v_lshl_add_u32 {vr(T1)}, {vr(T2)}, 3, {vr(T1)}")
    a(f"s_lshl_b32 {sr(S_T0)}, {sr(S_W)}, 8")
    for p in range(2):
        for x in range(2):
            a(f"buffer_load_dwordx2 {vr(V_MF+8+4*p+2*x,2)}, {vr(T1)}, {sr(S_WT,4)}, {sr(S_T0)} offen offset:{p*128 + x*32}")
    a(f"s_mov_b32 {sr(S_T1)}, 0x05040100"); a(f"s_mov_b32 {sr(S_T2)}, 0x07060302")
    a("s_waitcnt vmcnt(0)")
    for p in range(2):
        b = V_MF + 8 + 4*p; o = V_MF + 4*p
        a(f"v_perm_b32 {vr(o)}, {vr(b+2)}, {vr(b)}, {sr(S_T1)}")
        a(f"v_perm_b32 {vr(o+1)}, {vr(b+2)}, {vr(b)}, {sr(S_T2)}")
        a(f"v_perm_b32 {vr(o+2)}, {vr(b+3)}, {vr(b+1)}, {sr(S_T1)}")
        a(f"v_perm_b32 {vr(o+3)}, {vr(b+3)}, {vr(b+1)}, {sr(S_T2)}")

def post_weights(a):
    pass

def wait_kv(a, seg_expr_add, lab):
    a(f"s_add_u32 {sr(S_T0)}, {sr(S_STEP)}, {seg_expr_add}")
    a(f"s_min_u32 {sr(S_T0)}, {sr(S_T0)}, 63")
    a(f"s_bitcmp1_b64 {sr(S_RDY,2)}, {sr(S_T0)}")
    a(f"s_cbranch_scc1 {lab}_ok")
    a(f"v_lshrrev_b32 {vr(V_T)}, 2, {vr(V_LIN)}")
    a.label(f"{lab}_spin")
    a(f"buffer_load_dword {vr(V_JUNK)}, {vr(V_T)}, {sr(S_WS,4)}, {sr(S_FKV)} offen sc1")
    a("s_waitcnt vmcnt(0)")
    a(f"v_cmp_ne_u32 {sr(S_RDY,2)}, 0, {vr(V_JUNK)}")
    a(f"s_add_u32 {sr(S_TO)}, {sr(S_TO)}, 1")
    a(f"s_cmp_gt_u32 {sr(S_TO)}, 0x200000")
    a("s_cbranch_scc1 L_abort")
    a(f"s_bitcmp1_b64 {sr(S_RDY,2)}, {sr(S_T0)}")
    a(f"s_cbranch_scc0 {lab}_spin")
    a.label(f"{lab}_ok")

def k_dma(soff, sm0=None):
    return [f"s_mov_b32 m0, {sr(S_LDSK if sm0 is None else sm0)}",
            f"buffer_load_dwordx4 {vr(V_LIN)}, {sr(S_WS,4)}, {sr(soff)} offen sc1 lds",
            f"buffer_load_dwordx4 {vr(V_LIN)}, {sr(S_WS,4)}, {sr(soff)} offen offset:1024 sc1 lds"]

STAMP_REGS = list(range(42, 60, 2)) + list(range(64, 72, 2)) + list(range(84, 100, 2))
STAMPS = []
def stamp_ins(name, dbg):
    if not dbg or name not in dbg: return []
    if name not in STAMPS: STAMPS.append(name)
    return [f"s_memtime {sr(STAMP_REGS[STAMPS.index(name)], 2)}"]
def stamp(a, name, dbg):
    for x in stamp_ins(name, dbg): a(x)

def layer_start(a):
    a(f"s_mov_b32 {sr(S_STEP)}, 0")
    a(f"s_mov_b64 {sr(S_RDY,2)}, 0")
    a(f"s_lshl_b32 {sr(S_T0)}, {sr(S_LAYER)}, 11")
    a(f"s_add_u32 {sr(S_T0)}, {sr(S_T0)}, {sr(S_H)}")
    a(f"s_mul_i32 {sr(S_T1)}, {sr(S_T0)}, {QKV_SZ}")
    a(f"s_add_u32 {sr(S_T1)}, {sr(S_T1)}, {OFF_QKV}")
    a(f"s_lshl_b32 {sr(S_T2)}, {sr(S_W)}, 11")
    a(f"s_add_u32 {sr(S_KXN)}, {sr(S_T1)}, {sr(S_T2)}")
    a(f"s_add_u32 {sr(S_VXC)}, {sr(S_KXN)}, 8192")
    a(f"s_and_b32 {sr(S_T2)}, {sr(S_W)}, 1")
    a(f"s_lshl_b32 {sr(S_T2)}, {sr(S_T2)}, 13")
    a(f"s_add_u32 {sr(S_TCH)}, {sr(S_T1)}, {sr(S_T2)}")
    a(f"s_add_u32 {sr(S_TCH)}, {sr(S_TCH)}, {2*32*QKV_SZ}")
    a(f"s_lshl_b32 {sr(S_PUB)}, {sr(S_T0)}, 12")
    a(f"s_lshl_b32 {sr(S_T2)}, {sr(S_W)}, 10")
    a(f"s_add_u32 {sr(S_PUB)}, {sr(S_PUB)}, {sr(S_T2)}")
    a(f"s_add_u32 {sr(S_PUB)}, {sr(S_PUB)}, {OFF_KM - 32*4096}")
    a(f"s_lshl_b32 {sr(S_T0)}, {sr(S_LAYER)}, 5")
    a(f"s_add_u32 {sr(S_T0)}, {sr(S_T0)}, {sr(S_H)}")
    a(f"s_lshl_b32 {sr(S_FKV)}, {sr(S_T0)}, 8")
    a(f"s_add_u32 {sr(S_FKV)}, {sr(S_FKV)}, {F_KV}")
    a(f"s_lshl_b32 {sr(S_FKM)}, {sr(S_T0)}, 7")
    a(f"s_add_u32 {sr(S_FKM)}, {sr(S_FKM)}, {F_KM}")
    load_mem0(a)
    wait_kv(a, 0, "L_kv0")
    a(f"s_and_b32 {sr(S_LDSK)}, {sr(S_LDSK)}, 0x1fff")
    a(f"v_mov_b32 {vr(V_KXA)}, {vr(V_LIN)}")
    for x in k_dma(S_KXN): a(x)
    a(f"s_xor_b32 {sr(S_LDSK)}, {sr(S_LDSK)}, 0x2000")
    a(f"s_add_u32 {sr(S_KXN)}, {sr(S_KXN)}, {32*QKV_SZ}")
    wait_kv(a, 1, "L_kv1")
    wait_kv(a, 2, "L_kv2")
    hop_idle_prefetch(a)
    a("s_waitcnt vmcnt(0) lgkmcnt(0)")

def hop_idle_prefetch(a):
    for x in unit_reads(("Q", 0), V_X) + unit_reads(("K", 0), V_X + 16): a(x)
    for r in range(V_ACC, V_ACC + 24, 2): a(f"v_mov_b64 {vr(r,2)}, 0")

def pairpack_rows(dst, acc0, acc1):
    return [f"v_add_f32 {vr(acc0)}, {vr(acc0)}, {vr(acc0+2)}",
            f"v_add_f32 {vr(acc0+1)}, {vr(acc0+1)}, {vr(acc0+3)}",
            f"v_add_f32 {vr(acc1)}, {vr(acc1)}, {vr(acc1+2)}",
            f"v_add_f32 {vr(acc1+1)}, {vr(acc1+1)}, {vr(acc1+3)}",
            f"v_cvt_pk_bf16_f32 {vr(dst)}, {vr(acc0)}, {vr(acc1)}",
            f"v_cvt_pk_bf16_f32 {vr(dst+1)}, {vr(acc0+1)}, {vr(acc1+1)}"]
def pack_tile(dst, acc):
    return [f"v_add_f32 {vr(acc)}, {vr(acc)}, {vr(acc+2)}",
            f"v_add_f32 {vr(acc+1)}, {vr(acc+1)}, {vr(acc+3)}",
            f"v_cvt_pk_bf16_f32 {vr(dst)}, {vr(acc)}, {vr(acc+1)}"]

OUT = []
def flush_out():
    for f in OUT: f()
    OUT.clear()
DUMP = False
TCH_SH = 7
TCH_ON = True
TCH_MOD = 'sc1'
PUB_ON = True
DMA_ON = True
FIXV = False
def dump(a, slot, reg):
    if not DUMP: return
    a(f"s_lshl_b32 s3, {sr(S_H)}, 2"); a(f"s_add_u32 s3, s3, {sr(S_W)}"); a("s_lshl_b32 s3, s3, 14"); a(f"s_add_u32 s3, s3, {0xA000000 + slot*1024}")
    a("s_nop 7"); a("s_nop 7")
    a(f"buffer_store_dwordx4 {vr(reg,4)}, {vr(V_LIN)}, {sr(S_WS,4)}, s3 offen")
    a("s_waitcnt vmcnt(0)")

def step(a, st_mod, dbg=None, d1=300, d2=150, tag="", p2mode=0, g2=100, p1mode=0, g1=100):
    MF = lambda p: V_MF + 4 * p
    Q = lambda t: V_ACC + 4 * t
    K = lambda t: V_ACC + 8 + 4 * t
    V = lambda t: V_ACC + 16 + 4 * t
    X = V_X
    WIN = {("Q",0): X, ("K",0): X+16, ("V",1): X, ("K",2): X, ("K",3): X+16}
    def U(mat, p, t):
        c = (mat, p)
        return (UNIT_REG[c] if c in UNIT_REG else WIN[c]) + 8 * t
    accf = {"Q": Q, "K": K, "V": V}
    order = [("Q",0),("K",0),("Q",1),("K",1),("V",0),("V",1)] + [("Q",p) for p in range(2,8)] + [("V",2),("V",3)] + [("K",p) for p in range(2,8)] + [("V",4),("V",5)]
    main = []
    for (m, p) in order:
        for t in range(2): main.append(smf(accf[m](t), MF(p), U(m, p, t)))
    idx = lambda m, p: 2 * order.index((m, p))
    fill = {}
    def put(g, *ins): fill.setdefault(g, []).extend(ins)
    stamp(a, "t0", dbg)
    v1r = unit_reads(("V",1), X); k2r = unit_reads(("K",2), X); k3r = unit_reads(("K",3), X+16)
    mr = {2*q+i: f"ds_read_b128 {vr(MF(2*q+i),4)}, {vr(V_LM+q)} offset:{1024*i}" for q in range(1,4) for i in range(2)}
    PT = X + 32
    W = lambda n: f"s_waitcnt lgkmcnt({n})"
    kd = k_dma(S_KXN) if DMA_ON else ["s_nop 0"] * 3
    KXR = lambda f, dst: f"ds_read_b128 {vr(dst,4)}, {vr(V_KXA)} offset:{L_KX + 1024*f}"
    QF = lambda u: X + 4 * u
    QR = lambda u: f"ds_read_b128 {vr(QF(u),4)}, {vr(V_QR)} offset:{L_QE + 512*u}"
    put(0, f"ds_write_b128 {vr(V_LM)}, {vr(MF(0),4)}")
    put(1, f"ds_write_b128 {vr(V_LM)}, {vr(MF(1),4)} offset:1024")
    put(2, v1r[0], f"buffer_load_dwordx4 {vr(V_VX,4)}, {vr(V_LIN)}, {sr(S_WS,4)}, {sr(S_VXC)} offen sc1")
    put(3, v1r[1], f"buffer_load_dwordx4 {vr(V_VX+4,4)}, {vr(V_LIN)}, {sr(S_WS,4)}, {sr(S_VXC)} offen offset:1024 sc1")
    put(4, v1r[2], kd[0]); put(5, v1r[3], kd[1])
    put(6, W(4), "s_barrier", mr[2]); put(7, mr[3], kd[2])
    put(8, mr[4])
    if TCH_ON: put(8, f"buffer_load_dword {vr(V_JUNK)}, {vr(V_TCH)}, {sr(S_WS,4)}, {sr(S_TCH)} offen {TCH_MOD}")
    put(9, mr[5], W(4)); put(10, mr[6]); put(11, mr[7], W(5))
    put(12, k3r[0]); put(13, k3r[1], W(6)); put(14, k3r[2]); put(15, k3r[3], W(7))
    put(16, k2r[0]); put(17, k2r[1], W(8)); put(18, k2r[2]); put(19, k2r[3], W(9))
    put(20, f"ds_read_b128 {vr(PT,4)}, {vr(V_PUB)}", "s_waitcnt vmcnt(5)")
    put(21, W(9), KXR(4, MF(0))); put(22, KXR(5, MF(1)))
    QT = Q(0) + 2
    qp = pairpack_rows(QT, Q(0), Q(1))
    for i in range(6): put(25 + i, qp[i])
    put(27, W(2))
    fill[27] = [fill[27][1], fill[27][0]]
    put(23, W(2))
    if PUB_ON: put(24, f"buffer_store_dwordx4 {vr(PT,4)}, {vr(V_LIN)}, {sr(S_WS,4)}, {sr(S_PUB)} offen sc1")
    put(31, f"ds_write2_b32 {vr(V_QW)}, {vr(QT)}, {vr(QT+1)} offset1:16")
    put(32, KXR(0, X+16)); put(33, KXR(1, X+20)); put(34, KXR(2, X+24)); put(35, KXR(3, X+28)); put(36, KXR(6, MF(2)))
    put(37, W(5), "s_barrier", QR(0))
    put(38, QR(1)); put(39, QR(2)); put(40, QR(3)); put(41, KXR(7, MF(3)))
    KT = K(0) + 2
    kp = pairpack_rows(KT, K(0), K(1))
    put(41, kp[0]); put(42, kp[1]); put(43, kp[2])
    for g in range(len(main)): put(g, *stamp_ins(f"g{g}", dbg))
    for x in interleave(main, fill): a(x)
    stamp(a, "qk_end", dbg)
    _f0 = len(a.lines)
    SX0, SX1, SM = Q(0), Q(1), K(0)
    V_PX = K(1); V_OB = X + 4
    zero = lambda r: f"v_mov_b64 {vr(r,2)}, 0"
    a(W(3))
    a(mfma32(SX0, X+16, QF(0), "0"))
    a(kp[3]); a(kp[4])
    a(mfma32(SX1, MF(0), QF(0), "0"))
    a(kp[5]); a(zero(MF(4)))
    a(mfma32(SX0, X+20, QF(1), SX0))
    a(f"ds_write2_b32 {vr(V_KW)}, {vr(KT)}, {vr(KT+1)} offset1:16")
    a(W(2))
    a(mfma32(SX1, MF(1), QF(1), SX1))
    a(mfma32(SX0, X+24, QF(2), SX0))
    a(W(1)); a(zero(MF(4)+2))
    a(mfma32(SX1, MF(2), QF(2), SX1))
    a(zero(MF(0))); a(zero(MF(0)+2))
    a(mfma32(SX0, X+28, QF(3), SX0))
    a(zero(MF(1))); a(zero(MF(1)+2))
    a(mfma32(SX1, MF(3), QF(3), SX1))
    a(W(0))
    a("s_barrier")
    stamp(a, "b3", dbg)
    KMR = lambda u: f"ds_read_b128 {vr(X+16+4*u,4)}, {vr(V_QR)} offset:{L_KE + 512*u}"
    MX, T1, T2 = X+32, X+33, X+34
    mxs = [f"v_max3_f32 {vr(MX)}, {vr(SX0)}, {vr(SX0+1)}, {vr(SX0+2)}",
           f"v_max3_f32 {vr(T1)}, {vr(SX0+3)}, {vr(SX1)}, {vr(SX1+1)}",
           f"v_max3_f32 {vr(T2)}, {vr(SX1+2)}, {vr(SX1+3)}, {vr(MX)}",
           f"v_max_f32 {vr(T1)}, {vr(T1)}, {vr(T2)}"]
    a(KMR(0)); a(KMR(1))
    a(smf(V(0), MF(6), U("V", 6, 0)))
    a(KMR(2)); a(zero(MF(2)))
    a(smf(V(1), MF(6), U("V", 6, 1)))
    a(KMR(3)); a(zero(MF(2)+2))
    a(smf(V(0), MF(7), U("V", 7, 0)))
    a(f"s_cmp_eq_u32 {sr(S_W)}, 1")
    a(f"s_cbranch_scc0 L_npf{tag}")
    a(f"s_sub_i32 {sr(S_T0)}, {sr(S_STEP)}, 1"); a(f"s_max_i32 {sr(S_T0)}, {sr(S_T0)}, 0")
    a(f"v_mov_b32 {vr(V_T)}, {sr(S_T0)}"); a("s_mov_b64 exec, 1")
    a(f"buffer_store_dword {vr(V_T)}, {vr(V_LIN)}, {sr(S_WS,4)}, {sr(S_FKM)} offen sc1")
    a("s_mov_b64 exec, -1")
    a.label(f"L_npf{tag}")
    a(smf(V(1), MF(7), U("V", 7, 1)))
    a(W(3))
    OA_, OB_ = X + 16, V_ACC
    o0r = unit_reads(("O",0), OA_)
    vp0 = pack_tile(V_VM0, V(0)); vp1 = pack_tile(V_VM1, V(1))
    a(mfma32(SM, X+16, QF(0), "0"))
    a(W(2)); a(mxs[0])
    a(mfma32(SM, X+20, QF(1), SM))
    a(W(1)); a(mxs[1])
    a(mfma32(SM, X+24, QF(2), SM))
    a(W(0)); a(mxs[2])
    a(mfma32(SM, X+28, QF(3), SM))
    for x in o0r: a(x)
    a(mxs[3]); a(vp0[0]); a(vp0[1]); a(vp1[0])
    fine(a, _f0, dbg, "S", 4)
    _f0 = len(a.lines)
    dump(a, 0, SX0); dump(a, 1, SX1); dump(a, 2, SM)
    stamp(a, "s_end", dbg)
    a(f"v_max3_f32 {vr(MX)}, {vr(T1)}, {vr(SM)}, {vr(SM+1)}")
    a(vp1[1])
    a(f"v_mov_b32 {vr(T1)}, {vr(MX)}")
    a(zero(MF(3))); a(zero(MF(3)+2))
    a(f"v_permlane32_swap_b32 {vr(MX)}, {vr(T1)}")
    a(f"v_max_f32 {vr(MX)}, {vr(MX)}, {vr(T1)}")
    a(vp0[2])
    a(f"v_mov_b32 {vr(T1)}, {vr(MX)}")
    a(vp1[2]); a(zero(MF(5)))
    a(f"v_permlane16_swap_b32 {vr(MX)}, {vr(T1)}")
    a(f"v_max_f32 {vr(MX)}, {vr(MX)}, {vr(T1)}")
    a(zero(MF(5)+2))
    a(f"v_mul_f32 {vr(MX)}, {sr(S_CSC)}, {vr(MX)}")
    a("s_waitcnt vmcnt(4)")
    sc = [SX0, SX0+1, SX0+2, SX0+3, SX1, SX1+1, SX1+2, SX1+3, SM, SM+1]
    for r in sc[::2]:
        a(f"v_pk_fma_f32 {vr(r,2)}, {vr(r,2)}, {sr(S_CSC,2)}, {vr(MX,2)} op_sel_hi:[1,1,0] neg_lo:[0,0,1] neg_hi:[0,0,1]")
    for r in sc: a(f"v_exp_f32 {vr(r)}, {vr(r)}")
    for i in range(4): a(f"v_cvt_pk_bf16_f32 {vr(V_PX+i)}, {vr(sc[2*i])}, {vr(sc[2*i+1])}")
    a(f"v_cvt_pk_bf16_f32 {vr(V_PM)}, {vr(SM)}, {vr(SM+1)}")
    a(f"v_add_f32 {vr(SM)}, {vr(SM)}, {vr(SM+1)}")
    fine(a, _f0, dbg, "X", 4)
    _f0 = len(a.lines)
    stamp(a, "sm_end", dbg)
    OA = X + 0
    add = lambda d, x, y: f"v_add_f32 {vr(d)}, {vr(x)}, {vr(y)}"
    a(mfma32(OA, V_VX, V_PX, "0"))
    a(add(SX0, SX0, SX0+1)); a(add(SX0+2, SX0+2, SX0+3))
    a(mfma32(V_OB, V_VX+4, V_PX, "0"))
    a(add(SX1, SX1, SX1+1)); a(add(SX1+2, SX1+2, SX1+3)); a(add(SX0, SX0, SX0+2))
    a(mfma16(OA, V_VM0, V_PM, OA))
    a(add(SX1, SX1, SX1+2)); a(add(SX0, SX0, SM))
    a(mfma16(V_OB, V_VM1, V_PM, V_OB))
    a(add(MX, SX0, SX1))
    a(zero(MF(6)))
    a(f"v_mov_b32 {vr(T1)}, {vr(MX)}")
    a(zero(MF(6)+2)); a(zero(MF(7)))
    a(f"v_permlane32_swap_b32 {vr(MX)}, {vr(T1)}")
    a(add(MX, MX, T1))
    a(zero(MF(7)+2))
    a(f"v_mov_b32 {vr(T1)}, {vr(MX)}")
    a(f"s_mov_b64 exec, {sr(S_M1,2)}")
    a(f"v_mov_b64 {vr(OA,2)}, {vr(V_OB,2)}")
    a(f"v_mov_b64 {vr(OA+2,2)}, {vr(V_OB+2,2)}")
    a("s_mov_b64 exec, -1")
    a(f"v_permlane16_swap_b32 {vr(MX)}, {vr(T1)}")
    a(add(MX, MX, T1))
    a(f"v_rcp_f32 {vr(MX)}, {vr(MX)}")
    dump(a, 11, OA); dump(a, 12, MX); dump(a, 13, V_VM0)
    a(f"v_pk_mul_f32 {vr(OA,2)}, {vr(OA,2)}, {vr(MX,2)} op_sel_hi:[1,0]")
    a(f"v_pk_mul_f32 {vr(OA+2,2)}, {vr(OA+2,2)}, {vr(MX,2)} op_sel_hi:[1,0]")
    a(f"v_cvt_pk_bf16_f32 {vr(OA)}, {vr(OA)}, {vr(OA+1)}")
    a(f"v_cvt_pk_bf16_f32 {vr(OA+1)}, {vr(OA+2)}, {vr(OA+3)}")
    a(f"ds_write_b64 {vr(V_OW)}, {vr(OA,2)}")
    stamp(a, "o_wr", dbg)
    a(f"ds_write_b32 {vr(V_VW)}, {vr(V_VM0)}")
    a(f"ds_write_b32 {vr(V_VW)}, {vr(V_VM1)} offset:256")
    a("s_waitcnt lgkmcnt(2)")
    a("s_barrier")
    OF = X + 8
    a(f"ds_read_b128 {vr(OF,4)}, {vr(V_LIN)} offset:{L_OE}")
    a(f"ds_read_b128 {vr(OF+4,4)}, {vr(V_LIN)} offset:{L_OE + 1024}")
    o6r = unit_reads(("O",6), OB_)
    for x in o6r: a(x)
    fine(a, _f0, dbg, "P", 4)
    _f0 = len(a.lines)
    stamp(a, "pv_end", dbg)
    OWIN = {0: OA_, 6: OB_, 7: OA_}
    def UO(tt, kk2):
        c = ("O", 2 * (tt >> 1) + kk2)
        base = UNIT_REG[c] if c in UNIT_REG else OWIN[c[1]]
        return base + 8 * (tt & 1)
    WA = lambda tt: V_MF + 4 * tt
    PK = X + 0
    main = []; fill = {}
    for tp in range(4):
        for kk2 in range(2):
            for t in range(2): main.append(smf(WA(2*tp+t), OF + 4*kk2, UO(2*tp+t, kk2)))
    a("s_waitcnt lgkmcnt(5)")
    put(1, "s_waitcnt lgkmcnt(4)")
    o7r = unit_reads(("O",7), OA_)
    put(2, o7r[0]); put(3, o7r[1]); put(4, o7r[2]); put(5, o7r[3])
    put(11, "s_waitcnt lgkmcnt(0)")
    pk = [x for tt in range(8) for x in pack_tile(PK + tt, WA(tt))]
    sched = {5: pk[0:2], 6: pk[2:4], 7: pk[4:6], 9: pk[6:8], 10: pk[8:11], 11: pk[11:12] + [f"v_bfi_b32 {vr(PK+3)}, 1, {sr(S_PAR)}, {vr(PK+3)}"],
             12: [f"buffer_store_dwordx4 {vr(PK,4)}, {vr(V_H1ST)}, {sr(S_WS,4)}, 0 offen {st_mod}"],
             13: pk[12:14], 14: pk[14:16], 15: pk[16:18]}
    for g, ins in sched.items(): put(g, *ins)
    for x in interleave(main, fill): a(x)
    a(pk[18]); a(pk[19]); a(pk[20]); a(pk[21]); a(pk[22]); a(pk[23])
    a(f"v_bfi_b32 {vr(PK+7)}, 1, {sr(S_PAR)}, {vr(PK+7)}")
    a(f"buffer_store_dwordx4 {vr(PK+4,4)}, {vr(V_H1ST)}, {sr(S_WS,4)}, {sr(S_H1ST2)} offen {st_mod}")
    fine(a, _f0, dbg, "W", 4)
    stamp(a, "wo_end", dbg)
    SEL = V_ACC + 16
    RD = V_ACC + 20
    for d in range(4): a(f"v_cmp_eq_u32 {sr(S_TMP2 + 2*d, 2)}, {d}, {vr(V_SEL+1)}")
    for d in range(4): a(f"v_cndmask_b32 {vr(SEL+d)}, 0, {vr(V_SEL)}, {sr(S_TMP2 + 2*d, 2)}")
    for r in range(V_ACC, V_ACC + 16, 2): a(f"v_mov_b64 {vr(r,2)}, 0")
    scalar_updates(a)
    wait_kv(a, 2, f"L_kvs{tag}")
    pace(a, d1)
    stamp(a, "p1_go", dbg)
    def issue1(b):
        a(f"buffer_load_dwordx4 {vr(MF(b),4)}, {vr(V_LIN)}, {sr(S_WS,4)}, {sr(S_H1LD2)} offen sc1")
        a(f"buffer_load_dwordx4 {vr(MF(b+1),4)}, {vr(V_LIN)}, {sr(S_WS,4)}, {sr(S_H1LD2)} offen offset:1024 sc1")
    def check1(b, extra, fail):
        a(f"s_waitcnt vmcnt({1+extra})")
        a(mfma32(RD, SEL, MF(b), "0"))
        a(f"s_waitcnt vmcnt({extra})")
        a(mfma32(RD, SEL, MF(b+1), RD))
        a(f"v_bitop3_b32 {vr(V_T)}, 1, {vr(MF(b)+3)}, {sr(S_PAR)} bitop3:0x90")
        a(f"v_bitop3_b32 {vr(V_T)}, {vr(V_T)}, {vr(MF(b+1)+3)}, {sr(S_PAR)} bitop3:0x90")
        a(f"v_cmp_ne_u32 vcc, 1, {vr(V_T)}")
        a(f"s_cbranch_vccnz {fail}")
    ureads = unit_reads(("Q", 0), V_X) + unit_reads(("K", 0), V_X + 16)
    issue1(0)
    for x in ureads: a(x)
    a.label(f"L_p1c{tag}")
    check1(0, 0, f"L_p1f{tag}")
    OUT.append(lambda: (a.label(f"L_p1f{tag}"), issue1(0), a(f"s_add_u32 {sr(S_TO)}, {sr(S_TO)}, 1"), a(f"s_cmp_gt_u32 {sr(S_TO)}, 0x200000"),
                        a("s_cbranch_scc1 L_abort"), a(f"s_branch L_p1c{tag}")))
    for rot in (4, 8):
        for r in range(4): a(f"v_add_f32_dpp {vr(RD+r)}, {vr(RD+r)}, {vr(RD+r)} row_ror:{rot} row_mask:0xf bank_mask:0xf")
    a(f"v_cvt_pk_bf16_f32 {vr(X+32)}, {vr(RD)}, {vr(RD+2)}")
    a(f"v_cvt_pk_bf16_f32 {vr(X+33)}, {vr(RD+1)}, {vr(RD+3)}")
    a(f"s_mov_b64 exec, {sr(S_M8,2)}")
    a(f"v_cndmask_b32 {vr(X+32)}, {vr(X+32)}, {vr(X+33)}, {sr(S_M0,2)}")
    a(f"v_bfi_b32 {vr(X+32)}, {vr(V_TAGM)}, {sr(S_PAR)}, {vr(X+32)}")
    a(f"buffer_store_dword {vr(X+32)}, {vr(V_H2ST)}, {sr(S_WS,4)}, 0 offen {st_mod}")
    a("s_mov_b64 exec, -1")
    stamp(a, "h1_end", dbg)
    for r in range(V_ACC + 16, V_ACC + 24, 2): a(f"v_mov_b64 {vr(r,2)}, 0")
    pace(a, d2)
    def issue2():
        a(f"buffer_load_dwordx4 {vr(MF(0),4)}, {vr(V_LIN)}, {sr(S_WS,4)}, {sr(S_H2LD)} offen sc1")
        a(f"buffer_load_dwordx4 {vr(MF(1),4)}, {vr(V_LIN)}, {sr(S_WS,4)}, {sr(S_H2LD)} offen offset:1024 sc1")
    if p2mode >= 1:
        issue2(); pace(a, g2)
    issue2()
    a.label(f"L_p2c{tag}")
    a(f"s_waitcnt vmcnt({2*p2mode}) lgkmcnt(0)")
    a(f"v_bitop3_b32 {vr(V_T)}, 1, {vr(MF(0)+3)}, {sr(S_PAR)} bitop3:0x90")
    a(f"v_bitop3_b32 {vr(V_T)}, {vr(V_T)}, {vr(MF(1)+3)}, {sr(S_PAR)} bitop3:0x90")
    a(f"v_cmp_ne_u32 vcc, 1, {vr(V_T)}")
    a(f"s_cbranch_vccnz L_p2f{tag}")
    OUT.append(lambda: (a.label(f"L_p2f{tag}"), issue2(), a(f"s_add_u32 {sr(S_TO)}, {sr(S_TO)}, 1"), a(f"s_cmp_gt_u32 {sr(S_TO)}, 0x200000"),
                        a("s_cbranch_scc1 L_abort"), a(f"s_branch L_p2c{tag}")))
    a(f"s_xor_b32 {sr(S_PAR)}, {sr(S_PAR)}, 1")
    stamp(a, "h2_end", dbg)

def scalar_updates(a):
    a(f"s_add_u32 {sr(S_STEP)}, {sr(S_STEP)}, 1")
    a(f"s_add_u32 {sr(S_KXN)}, {sr(S_KXN)}, {32*QKV_SZ}")
    if not FIXV: a(f"s_add_u32 {sr(S_VXC)}, {sr(S_VXC)}, {32*QKV_SZ}")
    a(f"s_add_u32 {sr(S_PUB)}, {sr(S_PUB)}, {32*4096}")
    a(f"s_cmp_lt_u32 {sr(S_STEP)}, 62")
    a(f"s_cselect_b32 {sr(S_T0)}, {32*QKV_SZ}, 0")
    a(f"s_add_u32 {sr(S_TCH)}, {sr(S_TCH)}, {sr(S_T0)}")
    a(f"s_xor_b32 {sr(S_LDSK)}, {sr(S_LDSK)}, 0x2000")
    a(f"v_xor_b32 {vr(V_KXA)}, 0x2000, {vr(V_KXA)}")

def pace(a, cyc):
    n = cyc // 4
    while n > 0:
        k = min(n, 16); a(f"s_nop {k-1}"); n -= k

def tail(a):
    MF = lambda p: V_MF + 4 * p
    K = lambda t: V_ACC + 8 + 4 * t
    V = lambda t: V_ACC + 16 + 4 * t
    X = V_X
    a(f"ds_write_b128 {vr(V_LM)}, {vr(MF(0),4)}")
    a(f"ds_write_b128 {vr(V_LM)}, {vr(MF(1),4)} offset:1024")
    PT = X + 32
    a(f"ds_read_b128 {vr(PT,4)}, {vr(V_PUB)}")
    a("s_waitcnt lgkmcnt(0)")
    a(f"buffer_store_dwordx4 {vr(PT,4)}, {vr(V_LIN)}, {sr(S_WS,4)}, {sr(S_PUB)} offen sc1")
    a("s_barrier")
    for q in range(1, 4):
        for i in range(2): a(f"ds_read_b128 {vr(MF(2*q+i),4)}, {vr(V_LM+q)} offset:{1024*i}")
    for x in unit_reads(("K",2), X): a(x)
    for t in range(2): a(smf(K(t), MF(0), X + 16 + 8*t))
    for t in range(2): a(smf(K(t), MF(1), UNIT_REG[("K",1)] + 8*t))
    for x in unit_reads(("K",3), X+16): a(x)
    for t in range(2): a(smf(V(t), MF(0), UNIT_REG[("V",0)] + 8*t))
    a("s_waitcnt lgkmcnt(8)")
    for p in range(4, 8):
        for t in range(2): a(smf(K(t), MF(p), UNIT_REG[("K",p)] + 8*t))
    a("s_waitcnt lgkmcnt(0)")
    for t in range(2): a(smf(K(t), MF(2), X + 8*t))
    for t in range(2): a(smf(K(t), MF(3), X + 16 + 8*t))
    for x in unit_reads(("V",1), X): a(x)
    for p in range(2, 8):
        for t in range(2): a(smf(V(t), MF(p), UNIT_REG[("V",p)] + 8*t))
    a("s_waitcnt lgkmcnt(0)")
    for t in range(2): a(smf(V(t), MF(1), X + 8*t))
    KT = V_ACC
    for x in pairpack_rows(KT, K(0), K(1)): a(x)
    a(f"ds_write2_b32 {vr(V_KW)}, {vr(KT)}, {vr(KT+1)} offset1:16")
    VT = V_ACC + 4
    for x in pack_tile(VT, V(0)) + pack_tile(VT+1, V(1)): a(x)
    a(f"ds_write_b32 {vr(V_VW)}, {vr(VT)}")
    a(f"ds_write_b32 {vr(V_VW)}, {vr(VT+1)} offset:256")
    a("s_waitcnt lgkmcnt(0)")
    a("s_barrier")
    a(f"ds_read_b128 {vr(PT,4)}, {vr(V_PUB)}")
    a(f"s_add_u32 {sr(S_PUB)}, {sr(S_PUB)}, {32*4096}")
    a("s_waitcnt lgkmcnt(0)")
    a(f"buffer_store_dwordx4 {vr(PT,4)}, {vr(V_LIN)}, {sr(S_WS,4)}, {sr(S_PUB)} offen sc1")
    a("s_waitcnt vmcnt(0)")
    a("s_barrier")
    pub_flag(a, 64)

def pub_flag(a, val):
    lab = a.newlabel("L_pf")
    a(f"s_cmp_eq_u32 {sr(S_W)}, 1")
    a(f"s_cbranch_scc0 {lab}")
    a(f"v_mov_b32 {vr(V_T)}, {val}")
    a("s_mov_b64 exec, 1")
    a(f"buffer_store_dword {vr(V_T)}, {vr(V_LIN)}, {sr(S_WS,4)}, {sr(S_FKM)} offen sc1")
    a("s_mov_b64 exec, -1")
    a.label(lab)
```

```python
NSEG = 64; NH = 32
OFF_H1   = 0x0
OFF_H2   = 0x40000
OFF_FLAG = 0x42000
F_KV   = OFF_FLAG + 0x0000
F_KM   = OFF_FLAG + 0x4000
FL_H   = OFF_FLAG + 0x6000
FL_P   = OFF_FLAG + 0xA000
FL_H2  = OFF_FLAG + 0xE000
FL_X2  = OFF_FLAG + 0x12000
FL_Y   = OFF_FLAG + 0x14000
FLAG_BYTES = 0x18000
OFF_KM   = 0x100000
OFF_QKV  = 0x1100000
QKV_SZ = 16384
OFF_HF   = 0x5100000
OFF_HP   = 0x5500000
OFF_X1   = 0x5900000
OFF_X2   = 0x5D00000
OFF_YF   = 0x5F00000
OFF_PART = 0x6300000
OFF_TAB  = 0x7100000
OFF_LOG  = 0xA000000
WS_BYTES = 0x10000000
```

```python
from asmlib import *
from layout import *
import struct
def f32bits(x): return struct.unpack("<I", struct.pack("<f", x))[0]

S_KARG = 0; S_W = 4; S_H = 5; S_R = 6; S_SAFE = 7; S_WS = 8
S_XIN = 12
S_OUT = 16
S_L = 20; S_SEG = 21; S_POS = 22; S_NEXT = 23; S_SLOT = 24; S_NCOL = 25; S_COL = 26
S_T0 = 27; S_T1 = 28; S_T2 = 29; S_T3 = 30; S_T4 = 31
S_DPAR = 32; S_LU = 33; S_SIG0 = 34; S_SIG1 = 35; S_C1 = 36; S_C2 = 37; S_DSEG = 38
S_TO = 39
S_MASK = 40
S_SRD = 72
S_V = 88
S_CSC = 90
S_RET = 92
S_M32 = 94
V_LIN = 1; V_KST = 2; V_VST = 3; V_LU = 4; V_KMA = 5; V_VMA = 6; V_NEG = 7; V_TW = 8; V_PST = 9
V_RLD = 10; V_RX = 11; V_RH = 12; V_FA = 13; V_T = 14; V_T2 = 15
V_SEL = 16
V_0 = 20
WK = 256; WV = 384; WO = 128
L_Z = 0; L_F = 16384; L_EX = 20480; L_SC = 28672; L_WQ = 32768; L_END = L_WQ + 131072

def m32(d, a, b, c):
    return f"v_mfma_f32_32x32x16_bf16 {vr(d,16)}, {ur(a,4)}, {ur(b,4)}, {c if isinstance(c,str) else vr(c,16)}"
def m16(d, a, b, c):
    return f"v_mfma_f32_16x16x32_bf16 {vr(d,4)}, {ur(a,4)}, {ur(b,4)}, {c if isinstance(c,str) else vr(c,4)}"
def cvt(d, x, y): return f"v_cvt_pk_bf16_f32 {vr(d)}, {vr(x)}, {vr(y)}"

LOG = False
S_LOGP = 93
def log(a, ev, lin=None, t=None, t2=None):
    if not LOG: return
    lin = V_LIN if lin is None else lin; t = 126 if t is None else t
    lab = a.newlabel("L_lg")
    a(f"s_cmp_eq_u32 {sr(S_W)}, 0")
    a(f"s_cbranch_scc0 {lab}")
    a("s_memrealtime s[100:101]")
    a("s_waitcnt lgkmcnt(0)")
    a(f"v_mov_b32 {vr(V_T)}, s100"); a(f"v_mov_b32 {vr(V_T2)}, {ev}")
    a("s_mov_b64 exec, 1")
    a(f"buffer_store_dwordx2 {vr(V_T,2)}, {vr(lin)}, {sr(S_WS,4)}, {sr(S_LOGP)} offen")
    a("s_mov_b64 exec, -1")
    a(f"s_add_u32 {sr(S_LOGP)}, {sr(S_LOGP)}, 8")
    a.label(lab)

def timeout(a):
    a(f"s_add_u32 {sr(S_TO)}, {sr(S_TO)}, 1")
    a(f"s_cmp_gt_u32 {sr(S_TO)}, 0x400000")
    a("s_cbranch_scc1 L_abort")

def xstore(a, ins):
    l1, l2 = a.newlabel("L_xs"), a.newlabel("L_xe")
    a(f"s_cmp_eq_u32 {sr(S_SAFE)}, 0")
    a(f"s_cbranch_scc0 {l1}")
    for x in ins: a(x)
    a(f"s_branch {l2}")
    a.label(l1)
    for x in ins: a(x + " sc1")
    a.label(l2)

def set_flag(a, soff, local):
    lab = a.newlabel("L_sf")
    a("s_waitcnt vmcnt(0)")
    a("s_barrier")
    a(f"s_cmp_eq_u32 {sr(S_W)}, 0")
    a(f"s_cbranch_scc0 {lab}")
    a(f"v_mov_b32 {vr(V_T)}, 1")
    a("s_mov_b64 exec, 1")
    st = f"buffer_store_dword {vr(V_T)}, {vr(V_LIN)}, {sr(S_WS,4)}, {sr(soff)} offen"
    if local: xstore(a, [st])
    else: a(st + " sc1")
    a("s_mov_b64 exec, -1")
    a.label(lab)

def wait_flags32(a, soff, sleep=1):
    lab = a.newlabel("L_wf")
    a(f"v_lshrrev_b32 {vr(V_T2)}, 2, {vr(V_LIN)}")
    a(f"v_and_b32 {vr(V_T2)}, 0x7c, {vr(V_T2)}")
    a.label(lab)
    a(f"buffer_load_dword {vr(V_T)}, {vr(V_T2)}, {sr(S_WS,4)}, {sr(soff)} offen sc1")
    a("s_waitcnt vmcnt(0)")
    a(f"v_cmp_eq_u32 vcc, 0, {vr(V_T)}")
    a(f"s_cbranch_vccz {lab}_ok")
    timeout(a)
    if sleep: a(f"s_sleep {sleep}")
    a(f"s_branch {lab}")
    a.label(lab + "_ok")

def seg_off(a, dst, base, shift, seg=S_SEG, layer=True):
    if layer:
        a(f"s_lshl_b32 {sr(dst)}, {sr(S_L)}, 6")
        a(f"s_add_u32 {sr(dst)}, {sr(dst)}, {sr(seg)}")
        a(f"s_lshl_b32 {sr(dst)}, {sr(dst)}, {shift}")
    else:
        a(f"s_lshl_b32 {sr(dst)}, {sr(seg)}, {shift}")
    a(f"s_add_u32 {sr(dst)}, {sr(dst)}, {base}")

def own_flag(a, dst, base, seg=S_SEG, layer=True):
    seg_off(a, dst, base, 7, seg, layer)
    a(f"s_lshl_b32 {sr(S_T4)}, {sr(S_H)}, 2")
    a(f"s_add_u32 {sr(dst)}, {sr(dst)}, {sr(S_T4)}")

def prologue(a):
    L, T1, T2, T3, HI, TOK = V_0, V_0+1, V_0+2, V_0+3, V_0+4, V_0+5
    a(f"s_load_dwordx2 {sr(S_XIN,2)}, {sr(S_KARG,2)}, 0")
    a(f"s_load_dwordx2 {sr(S_OUT,2)}, {sr(S_KARG,2)}, 80")
    for i, off in enumerate((16, 24, 32, 40)):
        a(f"s_load_dwordx2 {sr(S_SRD+4*i,2)}, {sr(S_KARG,2)}, {off}")
    a(f"v_and_b32 {vr(L)}, 63, v0")
    a(f"v_lshlrev_b32 {vr(V_LIN)}, 4, {vr(L)}")
    a(f"v_lshrrev_b32 {vr(HI)}, 5, {vr(L)}")
    a(f"v_and_b32 {vr(TOK)}, 31, {vr(L)}")
    a(f"v_bfe_u32 {vr(T1)}, {vr(TOK)}, 3, 1")
    a(f"v_lshlrev_b32 {vr(V_KST)}, 12, {vr(T1)}")
    a(f"v_lshl_add_u32 {vr(V_KST)}, {vr(HI)}, 8, {vr(V_KST)}")
    a(f"v_lshrrev_b32 {vr(T1)}, 4, {vr(TOK)}")
    a(f"v_lshl_add_u32 {vr(V_KST)}, {vr(T1)}, 7, {vr(V_KST)}")
    a(f"v_and_b32 {vr(T2)}, 7, {vr(TOK)}")
    a(f"v_lshl_add_u32 {vr(V_KST)}, {vr(T2)}, 4, {vr(V_KST)}")
    a(f"v_bfe_u32 {vr(T2)}, {vr(TOK)}, 2, 1")
    a(f"v_lshlrev_b32 {vr(T3)}, 3, {vr(T2)}")
    a(f"v_bfe_u32 {vr(T2)}, {vr(TOK)}, 3, 1")
    a(f"v_lshl_add_u32 {vr(T3)}, {vr(T2)}, 2, {vr(T3)}")
    a(f"v_and_b32 {vr(T2)}, 3, {vr(TOK)}")
    a(f"v_add_u32 {vr(T3)}, {vr(T3)}, {vr(T2)}")
    a(f"v_lshlrev_b32 {vr(V_VST)}, 10, {vr(T1)}")
    a(f"v_lshl_add_u32 {vr(V_VST)}, {vr(HI)}, 8, {vr(V_VST)}")
    a(f"v_lshl_add_u32 {vr(V_VST)}, {vr(T3)}, 4, {vr(V_VST)}")
    a(f"v_lshlrev_b32 {vr(V_VMA)}, 8, {vr(T1)}")
    a(f"v_lshl_add_u32 {vr(V_VMA)}, {vr(T3)}, 4, {vr(V_VMA)}")
    a(f"v_lshl_add_u32 {vr(V_VMA)}, {vr(HI)}, 3, {vr(V_VMA)}")
    a(f"s_lshl_b32 {sr(S_T0)}, {sr(S_W)}, 9")
    a(f"s_add_u32 {sr(S_T0)}, {sr(S_T0)}, 2048")
    a(f"v_add_u32 {vr(V_VMA)}, {sr(S_T0)}, {vr(V_VMA)}")
    a(f"v_and_b32 {vr(T2)}, 7, {vr(TOK)}")
    a(f"v_lshlrev_b32 {vr(V_KMA)}, 6, {vr(T2)}")
    a(f"v_lshl_add_u32 {vr(V_KMA)}, {vr(HI)}, 4, {vr(V_KMA)}")
    a(f"v_mov_b32 {vr(V_NEG)}, 0xf149f2ca")
    a(f"s_lshl_b32 {sr(S_T0)}, {sr(S_W)}, 11")
    a(f"s_add_u32 {sr(S_T0)}, {sr(S_T0)}, {L_EX}")
    a(f"v_lshlrev_b32 {vr(V_TW)}, 6, {vr(TOK)}")
    a(f"v_lshl_add_u32 {vr(V_TW)}, {vr(HI)}, 4, {vr(V_TW)}")
    a(f"v_add_u32 {vr(V_TW)}, {sr(S_T0)}, {vr(V_TW)}")
    a(f"v_lshrrev_b32 {vr(T1)}, 2, {vr(L)}")
    a(f"v_lshlrev_b32 {vr(V_PST)}, 15, {vr(T1)}")
    a(f"v_and_b32 {vr(T2)}, 3, {vr(L)}")
    a(f"v_lshl_add_u32 {vr(V_PST)}, {vr(T2)}, 4, {vr(V_PST)}")
    a(f"s_lshl_b32 {sr(S_T0)}, {sr(S_H)}, 10")
    a(f"s_lshl_b32 {sr(S_T1)}, {sr(S_W)}, 8")
    a(f"s_add_u32 {sr(S_T0)}, {sr(S_T0)}, {sr(S_T1)}")
    a(f"v_add_u32 {vr(V_PST)}, {sr(S_T0)}, {vr(V_PST)}")
    a(f"v_lshrrev_b32 {vr(T1)}, 4, {vr(L)}")
    a(f"v_and_b32 {vr(T2)}, 15, {vr(L)}")
    a(f"v_lshlrev_b32 {vr(V_RLD)}, 10, {vr(T1)}")
    a(f"v_lshl_add_u32 {vr(V_RLD)}, {vr(T2)}, 4, {vr(V_RLD)}")
    a(f"s_lshl_b32 {sr(S_T0)}, {sr(S_H)}, 15")
    a(f"s_add_u32 {sr(S_T0)}, {sr(S_T0)}, {sr(S_T1)}")
    a(f"v_add_u32 {vr(V_RLD)}, {sr(S_T0)}, {vr(V_RLD)}")
    a(f"v_and_b32 {vr(T3)}, 1, {vr(T1)}")
    a(f"v_lshlrev_b32 {vr(V_RX)}, 4, {vr(T2)}")
    a(f"v_lshl_add_u32 {vr(V_RX)}, {vr(T3)}, 3, {vr(V_RX)}")
    a(f"s_lshl_b32 {sr(S_T0)}, {sr(S_H)}, 10")
    a(f"s_add_u32 {sr(S_T0)}, {sr(S_T0)}, {sr(S_T1)}")
    a(f"v_add_u32 {vr(V_RX)}, {sr(S_T0)}, {vr(V_RX)}")
    a(f"v_lshrrev_b32 {vr(V_RH)}, 1, {vr(T2)}")
    a(f"v_lshlrev_b32 {vr(V_RH)}, 10, {vr(V_RH)}")
    a(f"v_and_b32 {vr(T2)}, 1, {vr(T2)}")
    a(f"v_lshl_add_u32 {vr(V_RH)}, {vr(T2)}, 9, {vr(V_RH)}")
    a(f"v_lshl_add_u32 {vr(V_RH)}, {vr(T3)}, 3, {vr(V_RH)}")
    a(f"s_lshl_b32 {sr(S_T0)}, {sr(S_W)}, 13")
    a(f"s_lshl_b32 {sr(S_T2)}, {sr(S_H)}, 4")
    a(f"s_add_u32 {sr(S_T0)}, {sr(S_T0)}, {sr(S_T2)}")
    a(f"v_add_u32 {vr(V_RH)}, {sr(S_T0)}, {vr(V_RH)}")
    a(f"v_and_b32 {vr(T2)}, 3, {vr(L)}")
    a(f"v_lshlrev_b32 {vr(V_FA)}, 4, {vr(T2)}")
    a(f"v_lshl_add_u32 {vr(V_FA)}, {vr(HI)}, 6, {vr(V_FA)}")
    a(f"s_lshl_b32 {sr(S_T0)}, {sr(S_W)}, 10")
    a(f"s_add_u32 {sr(S_T0)}, {sr(S_T0)}, {L_F}")
    a(f"v_add_u32 {vr(V_FA)}, {sr(S_T0)}, {vr(V_FA)}")
    a(f"s_lshl_b32 {sr(S_LU)}, {sr(S_W)}, 15")
    a(f"s_add_u32 {sr(S_LU)}, {sr(S_LU)}, {L_WQ}")
    a(f"v_add_u32 {vr(V_LU)}, {sr(S_LU)}, {vr(V_LIN)}")
    a(f"v_and_b32 {vr(T1)}, 1, {vr(L)}")
    a(f"v_lshlrev_b32 {vr(T1)}, 4, {vr(T1)}")
    a(f"v_mov_b32 {vr(T2)}, 0x3f80")
    a(f"v_lshlrev_b32 {vr(T2)}, {vr(T1)}, {vr(T2)}")
    a(f"v_bfe_u32 {vr(T1)}, {vr(L)}, 1, 3")
    for d in range(4):
        a(f"v_cmp_eq_u32 vcc, {d}, {vr(T1)}")
        a(f"v_cndmask_b32 {vr(V_SEL+d)}, 0, {vr(T2)}, vcc")
    a(f"v_lshlrev_b32 {vr(T1)}, 2, {vr(HI)}")
    a(f"v_sub_u32 {vr(T1)}, {vr(TOK)}, {vr(T1)}")
    for i in range(16):
        a(f"v_cmp_le_i32 {sr(S_MASK+2*i,2)}, {8*(i>>2) + (i&3)}, {vr(T1)}")
    a(f"s_mov_b32 {sr(S_CSC)}, {hex(f32bits(128 ** -0.5 * 1.4426950408889634))}")
    a(f"s_mov_b32 {sr(S_M32)}, -1"); a(f"s_mov_b32 {sr(S_M32+1)}, 0")
    a(f"s_mov_b32 {sr(S_DPAR)}, 0"); a(f"s_mov_b32 {sr(S_SLOT)}, 0")
    a(f"s_lshl_b32 {sr(S_SIG0)}, {sr(S_R)}, 5")
    a(f"s_add_u32 {sr(S_SIG0)}, {sr(S_SIG0)}, {sr(S_H)}")
    a(f"s_add_u32 {sr(S_SIG1)}, {sr(S_H)}, 224")
    a(f"s_cmp_eq_u32 {sr(S_R)}, 3")
    a(f"s_cselect_b32 {sr(S_NCOL)}, 2, 1")
    a("s_waitcnt lgkmcnt(0)")
    for b in (S_XIN, S_OUT):
        a(f"s_mov_b32 {sr(b+2)}, 0x200000"); a(f"s_mov_b32 {sr(b+3)}, 0x20000")
    for i in range(4):
        a(f"s_mov_b32 {sr(S_SRD+2+4*i)}, 0x400000"); a(f"s_mov_b32 {sr(S_SRD+3+4*i)}, 0x20000")

def load_chunks(a, order, reload_srd=False):
    L, T1, T2, VQ, VO, VTR, TMP = V_0, V_0+1, V_0+2, V_0+3, V_0+4, V_0+5, V_0+8
    if reload_srd:
        a(f"s_load_dwordx2 {sr(S_SRD,2)}, {sr(S_KARG,2)}, 16")
        a("s_waitcnt lgkmcnt(0)")
        a(f"s_mov_b32 {sr(S_SRD+2)}, 0x400000"); a(f"s_mov_b32 {sr(S_SRD+3)}, 0x20000")
    a(f"v_lshrrev_b32 {vr(L)}, 4, {vr(V_LIN)}")
    a(f"v_lshrrev_b32 {vr(T1)}, 2, {vr(L)}")
    a(f"v_and_b32 {vr(T2)}, 3, {vr(L)}")
    a(f"v_lshlrev_b32 {vr(VQ)}, 13, {vr(T1)}")
    a(f"v_lshl_add_u32 {vr(VQ)}, {vr(T2)}, 4, {vr(VQ)}")
    a(f"s_lshl_b32 {sr(S_T0)}, {sr(S_H)}, 8")
    a(f"s_lshl_b32 {sr(S_T1)}, {sr(S_W)}, 6")
    a(f"s_add_u32 {sr(S_T0)}, {sr(S_T0)}, {sr(S_T1)}")
    a(f"v_add_u32 {vr(VQ)}, {sr(S_T0)}, {vr(VQ)}")
    a(f"v_lshlrev_b32 {vr(VO)}, 10, {vr(T1)}")
    a(f"v_lshl_add_u32 {vr(VO)}, {vr(T2)}, 4, {vr(VO)}")
    a(f"s_lshl_b32 {sr(S_T0)}, {sr(S_H)}, 17")
    a(f"s_lshl_b32 {sr(S_T1)}, {sr(S_W)}, 8")
    a(f"s_add_u32 {sr(S_T0)}, {sr(S_T0)}, {sr(S_T1)}")
    a(f"v_add_u32 {vr(VO)}, {sr(S_T0)}, {vr(VO)}")
    tr_base(a, VTR, L, T1)
    N = len(order)
    def issue(n):
        mat, p = order[n]; slot = n % 8
        sd = S_SRD + 4 * "QKVO".index(mat)
        for i in range(4):
            a(f"s_add_u32 m0, {sr(S_LU)}, {slot*4096 + i*1024}")
            if mat != "O":
                a(f"s_mov_b32 {sr(S_T1)}, {(64*p + 16*i)*8192}")
                a(f"buffer_load_dwordx4 {vr(VQ)}, {sr(sd,4)}, {sr(S_T1)} offen lds")
            else:
                ct, half = p >> 1, p & 1
                a(f"s_mov_b32 {sr(S_T1)}, {(64*half + 16*i)*1024 + ct*64}")
                a(f"buffer_load_dwordx4 {vr(VO)}, {sr(sd,4)}, {sr(S_T1)} offen lds")
    for n in range(min(7, N)): issue(n)
    for n in range(N):
        mat, p = order[n]; slot = n % 8
        if n + 7 < N: issue(n + 7)
        left = min(N, n + 8) - (n + 1)
        a(f"s_waitcnt vmcnt({4*left})")
        dst = {"K": WK + 16*p, "V": WV + 16*p, "O": WO + 32*(p >> 1) + 16*(p & 1), "Q": TMP}[mat]
        for q in range(4):
            for x in range(2):
                a(f"ds_read_b64_tr_b16 {ur(dst + 4*q + 2*x, 2)}, {vr(VTR)} offset:{slot*4096 + q*1024 + x*256}")
        a("s_waitcnt lgkmcnt(0)")
        if mat == "Q":
            assert slot == p
            for q in range(4): a(f"ds_write_b128 {vr(V_LU)}, {vr(TMP+4*q,4)} offset:{slot*4096 + q*1024}")
            a("s_waitcnt lgkmcnt(0)")

def tr_base(a, VTR, L, T1):
    a(f"v_bfe_u32 {vr(T1)}, {vr(L)}, 5, 1")
    a(f"v_lshlrev_b32 {vr(VTR)}, 9, {vr(T1)}")
    a(f"v_bfe_u32 {vr(T1)}, {vr(L)}, 2, 2")
    a(f"v_lshl_add_u32 {vr(VTR)}, {vr(T1)}, 6, {vr(VTR)}")
    a(f"v_bfe_u32 {vr(T1)}, {vr(L)}, 4, 1")
    a(f"v_lshl_add_u32 {vr(VTR)}, {vr(T1)}, 5, {vr(VTR)}")
    a(f"v_and_b32 {vr(T1)}, 1, {vr(L)}")
    a(f"v_lshl_add_u32 {vr(VTR)}, {vr(T1)}, 4, {vr(VTR)}")
    a(f"v_bfe_u32 {vr(T1)}, {vr(L)}, 1, 1")
    a(f"v_lshl_add_u32 {vr(VTR)}, {vr(T1)}, 3, {vr(VTR)}")
    a(f"v_add_u32 {vr(VTR)}, {sr(S_LU)}, {vr(VTR)}")

def h_stream(a, soff, ring, body, pre=None, nfr=32):
    nring = len(ring)
    def ld(ks):
        if ks and ks % 4 == 0: a(f"s_add_u32 {sr(soff)}, {sr(soff)}, 4096")
        a(f"buffer_load_dwordx4 {vr(ring[ks % nring],4)}, {vr(V_LIN)}, {sr(S_WS,4)}, {sr(soff)} offen offset:{1024*(ks % 4)} sc1")
    for ks in range(min(nring, nfr)): ld(ks)
    extra = 0
    if pre: extra = pre()
    for ks in range(nfr):
        issued = min(nfr, nring + ks)
        younger = issued - ks - 1 + (extra if ks < nring else 0)
        a(f"s_waitcnt vmcnt({min(younger, 63)})")
        body(ks, ring[ks % nring])
        if nring + ks < nfr: ld(nring + ks)

def task_kv(a):
    KA, VA = V_0 + 72, V_0 + 88
    seg_off(a, S_T0, FL_H, 7)
    wait_flags32(a, S_T0)
    log(a, 22)
    seg_off(a, S_T0, OFF_HF, 15)
    def body(ks, r):
        a(m32(KA, WK + 4*ks, r, "0" if ks == 0 else KA))
        a(m32(VA, r, WV + 4*ks, "0" if ks == 0 else VA))
    h_stream(a, S_T0, [V_0 + 4*i for i in range(18)], body)
    seg_off(a, S_T0, 0, 5)
    a(f"s_add_u32 {sr(S_T0)}, {sr(S_T0)}, {sr(S_H)}")
    a(f"s_lshl_b32 {sr(S_T0)}, {sr(S_T0)}, 14")
    a(f"s_add_u32 {sr(S_T0)}, {sr(S_T0)}, {OFF_QKV}")
    a(f"s_lshl_b32 {sr(S_T1)}, {sr(S_W)}, 10")
    a(f"s_add_u32 {sr(S_T2)}, {sr(S_T0)}, {sr(S_T1)}")
    a(f"s_add_u32 {sr(S_T3)}, {sr(S_T2)}, {sr(S_T1)}")
    a(f"s_add_u32 {sr(S_T3)}, {sr(S_T3)}, 8192")
    P = V_0
    for i in range(8): a(cvt(P + i, KA + 2*i, KA + 2*i + 1))
    for u in range(2): a(f"buffer_store_dwordx4 {vr(P+4*u,4)}, {vr(V_KST)}, {sr(S_WS,4)}, {sr(S_T2)} offen offset:{512*u} sc1")
    for i in range(8): a(cvt(P + 8 + i, VA + 2*i, VA + 2*i + 1))
    for u in range(2): a(f"buffer_store_dwordx4 {vr(P+8+4*u,4)}, {vr(V_VST)}, {sr(S_WS,4)}, {sr(S_T3)} offen offset:{512*u} sc1")
    a(f"s_lshl_b32 {sr(S_T0)}, {sr(S_L)}, 5")
    a(f"s_add_u32 {sr(S_T0)}, {sr(S_T0)}, {sr(S_H)}")
    a(f"s_lshl_b32 {sr(S_T0)}, {sr(S_T0)}, 6")
    a(f"s_add_u32 {sr(S_T0)}, {sr(S_T0)}, {sr(S_SEG)}")
    a(f"s_lshl_b32 {sr(S_T0)}, {sr(S_T0)}, 2")
    a(f"s_add_u32 {sr(S_T0)}, {sr(S_T0)}, {F_KV}")
    set_flag(a, S_T0, False)

def task_att(a):
    WQR = V_0 + 32
    QA = V_0 + 40
    KF = V_0 + 56
    SM = V_0 + 88
    VMF = V_0 + 104
    VF = WQR
    ring = [V_0 + 4*i for i in range(8)] + [SM + 4*i for i in range(4)]
    seg_off(a, S_T0, OFF_HF, 15)
    seg_off(a, S_T1, 0, 5)
    a(f"s_add_u32 {sr(S_T1)}, {sr(S_T1)}, {sr(S_H)}")
    a(f"s_lshl_b32 {sr(S_T2)}, {sr(S_T1)}, 12")
    a(f"s_add_u32 {sr(S_T2)}, {sr(S_T2)}, {OFF_KM}")
    a(f"s_lshl_b32 {sr(S_T1)}, {sr(S_T1)}, 14")
    a(f"s_add_u32 {sr(S_T1)}, {sr(S_T1)}, {OFF_QKV}")
    def pre():
        for f in range(8):
            a(f"buffer_load_dwordx4 {vr(KF+4*f,4)}, {vr(V_KST)}, {sr(S_WS,4)}, {sr(S_T1)} offen offset:{512*f} sc1")
        a(f"ds_read_b128 {vr(WQR,4)}, {vr(V_LU)}")
        return 8
    def body(ks, r):
        if ks + 1 < 32: a(f"ds_read_b128 {vr(WQR + 4*((ks+1)&1),4)}, {vr(V_LU)} offset:{1024*(ks+1)}")
        a(f"s_waitcnt lgkmcnt({1 if ks + 1 < 32 else 0})")
        a(m32(QA, WQR + 4*(ks&1), r, "0" if ks == 0 else QA))
    h_stream(a, S_T0, ring, body, pre)
    a(f"s_lshl_b32 {sr(S_T3)}, {sr(S_W)}, 11")
    a(f"s_add_u32 {sr(S_T0)}, {sr(S_T1)}, {sr(S_T3)}")
    a(f"s_add_u32 {sr(S_T0)}, {sr(S_T0)}, 8192")
    for u in range(2): a(f"buffer_load_dwordx4 {vr(VF+4*u,4)}, {vr(V_VST)}, {sr(S_WS,4)}, {sr(S_T0)} offen offset:{512*u} sc1")
    EXW = VMF
    a(f"s_add_u32 {sr(S_T3)}, {sr(S_T3)}, {L_EX}")
    a(f"v_add_u32 {vr(EXW)}, {sr(S_T3)}, {vr(V_LIN)}")
    P = V_0
    for i in range(8): a(cvt(P + i, QA + 2*i, QA + 2*i + 1))
    a(f"ds_write_b128 {vr(EXW)}, {vr(P,4)}")
    a(f"ds_write_b128 {vr(EXW)}, {vr(P+4,4)} offset:1024")
    a("s_waitcnt lgkmcnt(0)")
    a("s_barrier")
    QF = V_0
    for f in range(8): a(f"ds_read_b128 {vr(QF+4*f,4)}, {vr(V_LIN)} offset:{L_EX + 1024*f}")
    SX = QA
    for f in range(8):
        a(f"s_waitcnt lgkmcnt({7-f})")
        a(m32(SX, KF + 4*f, QF + 4*f, "0" if f == 0 else SX))
    a("s_barrier")
    for i in range(16): a(f"v_cndmask_b32 {vr(SX+i)}, {vr(V_NEG)}, {vr(SX+i)}, {sr(S_MASK+2*i,2)}")
    MX = SM + 15
    a(f"v_max3_f32 {vr(VMF+2)}, {vr(SX)}, {vr(SX+1)}, {vr(SX+2)}")
    for i in range(3, 15, 2): a(f"v_max3_f32 {vr(VMF+2)}, {vr(VMF+2)}, {vr(SX+i)}, {vr(SX+i+1)}")
    a(f"v_max_f32 {vr(VMF+2)}, {vr(VMF+2)}, {vr(SX+15)}")
    log(a, 34)
    lab = a.newlabel("L_km")
    a(f"s_lshl_b32 {sr(S_T0)}, {sr(S_L)}, 5")
    a(f"s_add_u32 {sr(S_T0)}, {sr(S_T0)}, {sr(S_H)}")
    a(f"s_lshl_b32 {sr(S_T0)}, {sr(S_T0)}, 7")
    a(f"s_add_u32 {sr(S_T0)}, {sr(S_T0)}, {F_KM}")
    a(f"v_mov_b32 {vr(V_T2)}, 0")
    a.label(lab)
    a(f"buffer_load_dword {vr(V_T)}, {vr(V_T2)}, {sr(S_WS,4)}, {sr(S_T0)} offen sc1")
    a("s_waitcnt vmcnt(0)")
    a(f"v_cmp_lt_u32 vcc, {sr(S_SEG)}, {vr(V_T)}")
    a(f"s_cbranch_vccnz {lab}_ok")
    timeout(a)
    a("s_sleep 2")
    a(f"s_branch {lab}")
    a.label(lab + "_ok")
    log(a, 24)
    for f in range(8):
        a(f"buffer_load_dwordx4 {vr(KF+4*f,4)}, {vr(V_KMA)}, {sr(S_WS,4)}, {sr(S_T2)} offen offset:{512*(f>>1) + 32*(f&1)} sc1")
    a(f"buffer_load_dwordx2 {vr(VMF,2)}, {vr(V_VMA)}, {sr(S_WS,4)}, {sr(S_T2)} offen sc1")
    for f in range(8):
        a(f"s_waitcnt vmcnt({8-f})")
        a(m32(SM, KF + 4*f, QF + 4*f, "0" if f == 0 else SM))
    MX, T1 = V_T, V_T2
    a(f"v_max3_f32 {vr(MX)}, {vr(VMF+2)}, {vr(SM)}, {vr(SM+1)}")
    a(f"v_max3_f32 {vr(MX)}, {vr(MX)}, {vr(SM+2)}, {vr(SM+3)}")
    a(f"v_mov_b64 {vr(VMF+2,2)}, 0")
    a(f"v_mov_b32 {vr(T1)}, {vr(MX)}")
    a(f"v_permlane32_swap_b32 {vr(MX)}, {vr(T1)}")
    a(f"v_max_f32 {vr(MX)}, {vr(MX)}, {vr(T1)}")
    a(f"v_mul_f32 {vr(MX)}, {sr(S_CSC)}, {vr(MX)}")
    sc = [SX + i for i in range(16)] + [SM + i for i in range(4)]
    for r in sc: a(f"v_fma_f32 {vr(r)}, {vr(r)}, {sr(S_CSC)}, -{vr(MX)}")
    for r in sc: a(f"v_exp_f32 {vr(r)}, {vr(r)}")
    PX, PM = KF, KF + 8
    for i in range(8): a(cvt(PX + i, SX + 2*i, SX + 2*i + 1))
    a(cvt(PM, SM, SM + 1)); a(cvt(PM + 1, SM + 2, SM + 3))
    a(f"v_mov_b64 {vr(PM+2,2)}, 0")
    OA = KF + 16
    a("s_waitcnt vmcnt(0)")
    a(m32(OA, VF, PX, "0"))
    a(m32(OA, VF + 4, PX + 4, OA))
    a(m32(OA, VMF, PM, OA))
    n = 20
    vals = list(sc)
    while len(vals) > 1:
        nxt = []
        for i in range(0, len(vals) - 1, 2):
            a(f"v_add_f32 {vr(vals[i])}, {vr(vals[i])}, {vr(vals[i+1])}"); nxt.append(vals[i])
        if len(vals) % 2: nxt.append(vals[-1])
        vals = nxt
    a(f"v_mov_b32 {vr(T1)}, {vr(SX)}")
    a(f"v_permlane32_swap_b32 {vr(SX)}, {vr(T1)}")
    a(f"v_add_f32 {vr(MX)}, {vr(SX)}, {vr(T1)}")
    a(f"v_rcp_f32 {vr(MX)}, {vr(MX)}")
    a(f"v_add_u32 {vr(T1)}, {sr(S_T3)}, {vr(V_LIN)}")
    for i in range(16): a(f"v_mul_f32 {vr(OA+i)}, {vr(OA+i)}, {vr(MX)}")
    for i in range(8): a(cvt(P + i, OA + 2*i, OA + 2*i + 1))
    a(f"ds_write_b128 {vr(T1)}, {vr(P,4)}")
    a(f"ds_write_b128 {vr(T1)}, {vr(P+4,4)} offset:1024")
    a("s_waitcnt lgkmcnt(0)")
    a("s_barrier")
    OF = V_0
    for f in range(8): a(f"ds_read_b128 {vr(OF+4*f,4)}, {vr(V_LIN)} offset:{L_EX + 1024*f}")
    a(f"s_lshl_b32 {sr(S_T0)}, {sr(S_R)}, 1")
    a(f"s_add_u32 {sr(S_T0)}, {sr(S_T0)}, {sr(S_SLOT)}")
    a(f"s_lshl_b32 {sr(S_T0)}, {sr(S_T0)}, 20")
    a(f"s_add_u32 {sr(S_T0)}, {sr(S_T0)}, {OFF_PART}")
    a(f"s_add_u32 {sr(S_T1)}, {sr(S_T0)}, {16*32768}")
    AC = [QA, KF, KF + 16, SM]
    for f in range(8):
        a(f"s_waitcnt lgkmcnt({7-f})")
        a(m32(AC[0], WO + 4*f, OF + 4*f, "0" if f == 0 else AC[0]))
    a("s_barrier")
    PK, RB = WQR, VMF
    def epi(ct):
        acc = AC[ct]
        ins = [cvt(PK + i, acc + 2*i, acc + 2*i + 1) for i in range(8)]
        ins += [f"ds_write_b128 {vr(V_TW)}, {vr(PK,4)}", f"ds_write_b128 {vr(V_TW)}, {vr(PK+4,4)} offset:32",
                f"ds_read_b128 {vr(acc,4)}, {vr(T1)}", f"ds_read_b128 {vr(acc+4,4)}, {vr(T1)} offset:1024"]
        return ins
    def st(ct):
        acc = AC[ct]
        a("s_waitcnt lgkmcnt(0)")
        xstore(a, [f"buffer_store_dwordx4 {vr(acc,4)}, {vr(V_PST)}, {sr(S_WS,4)}, {sr(S_T0)} offen offset:{64*ct}",
                   f"buffer_store_dwordx4 {vr(acc+4,4)}, {vr(V_PST)}, {sr(S_WS,4)}, {sr(S_T1)} offen offset:{64*ct}"])
    for ct in range(1, 4):
        e = epi(ct - 1)
        for f in range(8):
            a(m32(AC[ct], WO + 32*ct + 4*f, OF + 4*f, "0" if f == 0 else AC[ct]))
            if f >= 2:
                for x in e[2*(f-2):2*(f-2)+2]: a(x)
        st(ct - 1)
    for x in epi(3): a(x)
    st(3)
    own_flag(a, S_T0, FL_P)
    set_flag(a, S_T0, True)

def task_row(a, with_part):
    D, R, X = V_0 + 32, V_0 + 36, V_0 + 40
    lab = a.newlabel("L_row")
    if with_part:
        seg_off(a, S_T0, FL_P, 7)
        wait_flags32(a, S_T0, sleep=0)
        log(a, 25)
        a(f"s_lshl_b32 {sr(S_T0)}, {sr(S_R)}, 1")
        a(f"s_add_u32 {sr(S_T0)}, {sr(S_T0)}, {sr(S_SLOT)}")
        a(f"s_lshl_b32 {sr(S_T0)}, {sr(S_T0)}, 20")
        a(f"s_add_u32 {sr(S_T0)}, {sr(S_T0)}, {OFF_PART}")
        for j in range(8):
            a(f"buffer_load_dwordx4 {vr(V_0+4*j,4)}, {vr(V_RLD)}, {sr(S_WS,4)}, {sr(S_T0)} offen sc1")
            if j < 7: a(f"s_add_u32 {sr(S_T0)}, {sr(S_T0)}, 4096")
        a(f"s_xor_b32 {sr(S_SLOT)}, {sr(S_SLOT)}, 1")
    else:
        a(f"s_cmp_eq_u32 {sr(S_L)}, 0")
        a(f"s_cbranch_scc1 {lab}_nw")
        seg_off(a, S_T0, FL_X2, 7, layer=False)
        wait_flags32(a, S_T0, sleep=0)
        a.label(lab + "_nw")
    a(f"s_lshl_b32 {sr(S_T1)}, {sr(S_SEG)}, 15")
    a(f"s_cmp_eq_u32 {sr(S_L)}, 0")
    a(f"s_cbranch_scc0 {lab}_x2")
    a(f"buffer_load_dwordx2 {vr(R,2)}, {vr(V_RX)}, {sr(S_XIN,4)}, {sr(S_T1)} offen")
    a(f"s_branch {lab}_xd")
    a.label(lab + "_x2")
    a(f"s_add_u32 {sr(S_T2)}, {sr(S_T1)}, {OFF_X2}")
    a(f"buffer_load_dwordx2 {vr(R,2)}, {vr(V_RX)}, {sr(S_WS,4)}, {sr(S_T2)} offen sc1")
    a.label(lab + "_xd")
    unpack = lambda d, s_: [f"v_lshlrev_b32 {vr(d)}, 16, {vr(s_)}", f"v_and_b32 {vr(d+1)}, 0xffff0000, {vr(s_)}"]
    if with_part:
        for j in range(8):
            a(f"s_waitcnt vmcnt({8-j})")
            a(m16(D, V_SEL, V_0 + 4*j, "0" if j == 0 else D))
        a("s_waitcnt vmcnt(0)")
        for x in unpack(X, R) + unpack(X+2, R+1): a(x)
        a(cvt(D, D, D+1)); a(cvt(D+1, D+2, D+3))
        for x in unpack(R+2, D+1) + unpack(R, D): a(x)
        for i in range(4): a(f"v_add_f32 {vr(X+i)}, {vr(X+i)}, {vr(R+i)}")
        a(cvt(R, X, X+1)); a(cvt(R+1, X+2, X+3))
        seg_off(a, S_T2, OFF_X1, 15)
        a(f"s_mov_b64 exec, {sr(S_M32,2)}")
        xstore(a, [f"buffer_store_dwordx2 {vr(R,2)}, {vr(V_RX)}, {sr(S_WS,4)}, {sr(S_T2)} offen"])
        a("s_mov_b64 exec, -1")
    else:
        a("s_waitcnt vmcnt(0)")
    for x in unpack(X, R) + unpack(X+2, R+1): a(x)
    S1, S2, T = D, D + 1, D + 2
    a(f"v_add_f32 {vr(S1)}, {vr(X)}, {vr(X+1)}")
    a(f"v_mul_f32 {vr(S2)}, {vr(X)}, {vr(X)}")
    a(f"v_add_f32 {vr(T)}, {vr(X+2)}, {vr(X+3)}")
    a(f"v_fmac_f32 {vr(S2)}, {vr(X+1)}, {vr(X+1)}")
    a(f"v_add_f32 {vr(S1)}, {vr(S1)}, {vr(T)}")
    a(f"v_fmac_f32 {vr(S2)}, {vr(X+2)}, {vr(X+2)}")
    a(f"v_fmac_f32 {vr(S2)}, {vr(X+3)}, {vr(X+3)}")
    for rot in (8, 4, 2, 1):
        for r in (S1, S2): a(f"v_add_f32_dpp {vr(r)}, {vr(r)}, {vr(r)} row_ror:{rot} row_mask:0xf bank_mask:0xf")
    a(f"v_lshrrev_b32 {vr(T)}, 5, {vr(V_LIN)}")
    a(f"s_lshl_b32 {sr(S_T0)}, {sr(S_W)}, 4")
    a(f"s_add_u32 {sr(S_T0)}, {sr(S_T0)}, {L_SC + 3072}")
    a(f"v_add_u32 {vr(T)}, {sr(S_T0)}, {vr(T)}")
    a("s_mov_b64 exec, 0x10001")
    a(f"ds_write_b64 {vr(T)}, {vr(S1,2)}")
    a("s_mov_b64 exec, -1")
    a("s_waitcnt lgkmcnt(0)")
    a("s_barrier")
    a(f"v_mov_b32 {vr(T)}, {L_SC + 3072}")
    for i in range(4): a(f"ds_read_b128 {vr(V_0+4*i,4)}, {vr(T)} offset:{16*i}")
    a("s_waitcnt lgkmcnt(0)")
    for st_ in (8, 4, 2):
        for i in range(st_): a(f"v_add_f32 {vr(V_0+i)}, {vr(V_0+i)}, {vr(V_0+i+st_)}")
    MU, VA = V_0, V_0 + 1
    a(f"v_mul_f32 {vr(MU)}, {hex(f32bits(1/512))}, {vr(MU)}")
    a(f"v_mul_f32 {vr(VA)}, {hex(f32bits(1/512))}, {vr(VA)}")
    a(f"v_fma_f32 {vr(VA)}, -{vr(MU)}, {vr(MU)}, {vr(VA)}")
    a(f"v_max_f32 {vr(VA)}, 0, {vr(VA)}")
    a(f"v_add_f32 {vr(VA)}, {hex(f32bits(1e-5))}, {vr(VA)}")
    a(f"v_rsq_f32 {vr(VA)}, {vr(VA)}")
    for i in range(4): a(f"v_sub_f32 {vr(X+i)}, {vr(X+i)}, {vr(MU)}")
    for i in range(4): a(f"v_mul_f32 {vr(X+i)}, {vr(X+i)}, {vr(VA)}")
    a(cvt(X, X, X+1)); a(cvt(X+1, X+2, X+3))
    seg_off(a, S_T2, OFF_HP if with_part else OFF_HF, 15)
    a(f"s_mov_b64 exec, {sr(S_M32,2)}")
    st_ = f"buffer_store_dwordx2 {vr(X,2)}, {vr(V_RH)}, {sr(S_WS,4)}, {sr(S_T2)} offen"
    if with_part: a(st_ + " sc1")
    else: xstore(a, [st_])
    a("s_mov_b64 exec, -1")
    own_flag(a, S_T0, FL_H2 if with_part else FL_H)
    set_flag(a, S_T0, not with_part)

def trig(a, dst, idx, mask, inv_n, phase_reg=None, phase=0.0):
    a(f"v_and_b32 {vr(dst)}, {mask}, {vr(idx)}")
    a(f"v_cvt_f32_u32 {vr(dst)}, {vr(dst)}")
    if phase_reg is not None:
        a(f"v_fma_f32 {vr(dst)}, {vr(dst)}, {sr(inv_n)}, {vr(phase_reg)}")
    else:
        a(f"v_mul_f32 {vr(dst)}, {sr(inv_n)}, {vr(dst)}")
        if phase: a(f"v_add_f32 {vr(dst)}, {hex(f32bits(phase))}, {vr(dst)}")
    a(f"v_cos_f32 {vr(dst)}, {vr(dst)}")

def phi_of(a, dst, sig):
    a(f"s_cmp_eq_u32 {sr(sig)}, 0")
    a(f"s_cselect_b32 {sr(dst)}, 0x100, {sr(sig)}")

def gen_F(a):
    T, D0, PH, PHS, B = V_0, V_0+1, V_0+2, V_0+3, V_0+4
    O = V_0 + 16
    a(f"s_lshl_b32 {sr(S_T0)}, {sr(S_W)}, 6")
    a(f"v_lshrrev_b32 {vr(T)}, 4, {vr(V_LIN)}")
    a(f"v_add_u32 {vr(T)}, {sr(S_T0)}, {vr(T)}")
    a(f"v_lshrrev_b32 {vr(D0)}, 2, {vr(T)}")
    a(f"v_lshlrev_b32 {vr(D0)}, 3, {vr(D0)}")
    phi_of(a, S_T1, S_SIG0)
    a(f"v_mov_b32 {vr(PH)}, {sr(S_T1)}")
    a(f"v_mov_b32 {vr(B)}, {sr(S_SIG1)}")
    a(f"v_and_b32 {vr(PHS)}, 2, {vr(T)}")
    a(f"v_cmp_ne_u32 vcc, 0, {vr(PHS)}")
    a(f"v_cndmask_b32 {vr(PH)}, {vr(PH)}, {vr(B)}, vcc")
    a(f"v_and_b32 {vr(PHS)}, 1, {vr(T)}")
    a(f"v_cvt_f32_u32 {vr(PHS)}, {vr(PHS)}")
    a(f"v_mul_f32 {vr(PHS)}, 0x3e800000, {vr(PHS)}")
    a(f"v_mul_lo_u32 {vr(D0)}, {vr(D0)}, {vr(PH)}")
    a(f"s_mov_b32 {sr(S_C1)}, {hex(f32bits(1/512))}")
    for i in range(8):
        trig(a, B + i, D0, 511, S_C1, PHS)
        if i < 7: a(f"v_add_u32 {vr(D0)}, {vr(D0)}, {vr(PH)}")
    for i in range(4): a(cvt(O + i, B + 2*i, B + 2*i + 1))
    a(f"v_lshlrev_b32 {vr(T)}, 4, {vr(T)}")
    a(f"ds_write_b128 {vr(T)}, {vr(O,4)} offset:{L_F}")
    a("s_waitcnt lgkmcnt(0)")

def task_dftd(a):
    FA, DA = V_0 + 32, V_0 + 64
    seg_off(a, S_T0, FL_H2, 7, seg=S_DSEG)
    wait_flags32(a, S_T0)
    log(a, 23)
    seg_off(a, S_T0, OFF_HP, 15, seg=S_DSEG)
    a(f"s_lshl_b32 {sr(S_T1)}, {sr(S_W)}, 13")
    a(f"s_add_u32 {sr(S_T0)}, {sr(S_T0)}, {sr(S_T1)}")
    def pre():
        for j in range(8): a(f"ds_read_b128 {vr(FA+4*j,4)}, {vr(V_FA)} offset:{128*j}")
        a("s_waitcnt lgkmcnt(0)")
        return 0
    def body(j, r): a(m32(DA, FA + 4*j, r, "0" if j == 0 else DA))
    h_stream(a, S_T0, [V_0 + 4*i for i in range(8)], body, pre, nfr=8)
    T, T2, Z = V_0, V_0 + 1, V_0 + 2
    a(f"s_lshl_b32 {sr(S_T0)}, {sr(S_W)}, 9")
    a(f"s_add_u32 {sr(S_T0)}, {sr(S_T0)}, {sr(S_DPAR)}")
    a(f"s_add_u32 {sr(S_T0)}, {sr(S_T0)}, {L_SC}")
    a(f"v_add_u32 {vr(T)}, {sr(S_T0)}, {vr(V_LIN)}")
    a(f"s_mov_b64 exec, {sr(S_M32,2)}")
    a(f"ds_write_b128 {vr(T)}, {vr(DA,4)}")
    a("s_mov_b64 exec, -1")
    a("s_waitcnt lgkmcnt(0)")
    a("s_barrier")
    lab = a.newlabel("L_dd")
    a(f"s_cmp_eq_u32 {sr(S_W)}, 0")
    a(f"s_cbranch_scc0 {lab}")
    a(f"v_and_b32 {vr(T)}, 0x1f0, {vr(V_LIN)}")
    a(f"v_lshrrev_b32 {vr(T2)}, 9, {vr(V_LIN)}")
    a(f"v_lshl_add_u32 {vr(T)}, {vr(T2)}, 3, {vr(T)}")
    a(f"v_add_u32 {vr(T)}, {sr(S_T0)}, {vr(T)}")
    for w in range(4): a(f"ds_read_b64 {vr(V_0+4+2*w,2)}, {vr(T)} offset:{512*w}")
    a(f"v_lshlrev_b32 {vr(Z)}, 13, {vr(T2)}")
    a(f"v_bfe_u32 {vr(T2)}, {vr(V_LIN)}, 4, 5")
    a(f"v_lshl_add_u32 {vr(Z)}, {vr(T2)}, 7, {vr(Z)}")
    a(f"v_and_b32 {vr(T2)}, 7, {vr(T2)}")
    a(f"s_lshr_b32 {sr(S_T1)}, {sr(S_DSEG)}, 3")
    a(f"v_xor_b32 {vr(T2)}, {sr(S_T1)}, {vr(T2)}")
    a(f"v_lshl_add_u32 {vr(Z)}, {vr(T2)}, 4, {vr(Z)}")
    a(f"s_and_b32 {sr(S_T1)}, {sr(S_DSEG)}, 1")
    a(f"s_lshl_b32 {sr(S_T1)}, {sr(S_T1)}, 12")
    a(f"s_and_b32 {sr(S_T2)}, {sr(S_DSEG)}, 6")
    a(f"s_lshl_b32 {sr(S_T2)}, {sr(S_T2)}, 1")
    a(f"s_add_u32 {sr(S_T1)}, {sr(S_T1)}, {sr(S_T2)}")
    a(f"v_add_u32 {vr(Z)}, {sr(S_T1)}, {vr(Z)}")
    a("s_waitcnt lgkmcnt(0)")
    for c in range(2):
        a(f"v_add_f32 {vr(V_0+4+c)}, {vr(V_0+4+c)}, {vr(V_0+6+c)}")
        a(f"v_add_f32 {vr(V_0+8+c)}, {vr(V_0+8+c)}, {vr(V_0+10+c)}")
    for c in range(2): a(f"v_add_f32 {vr(V_0+4+c)}, {vr(V_0+4+c)}, {vr(V_0+8+c)}")
    a(cvt(V_0 + 4, V_0 + 4, V_0 + 5))
    a(f"ds_write_b32 {vr(Z)}, {vr(V_0+4)} offset:{L_Z}")
    a("s_waitcnt lgkmcnt(0)")
    a.label(lab)
    a(f"s_xor_b32 {sr(S_DPAR)}, {sr(S_DPAR)}, 0x800")

TAB_W = 36864
T_A64, T_TW1, T_TW2, T_WF, T_A32, T_G = 0, 8192, 12288, 16384, 24576, 32768
L_CW = L_WQ
L_A32 = L_WQ + 98304; L_T = L_A32 + 8192; L_YB = L_T + 8192; L_PL = L_YB + 8192; L_UT = L_EX

def tab_base(a, dst):
    a(f"s_lshl_b32 {sr(dst)}, {sr(S_SIG0)}, 2")
    a(f"s_add_u32 {sr(dst)}, {sr(dst)}, {sr(S_W)}")
    a(f"s_mul_i32 {sr(dst)}, {sr(dst)}, {TAB_W}")
    a(f"s_add_u32 {sr(dst)}, {sr(dst)}, {OFF_TAB}")

def sincos(a, C, S, idx, mask, inv_reg):
    a(f"v_and_b32 {vr(C)}, {mask}, {vr(idx)}")
    a(f"v_cvt_f32_u32 {vr(C)}, {vr(C)}")
    a(f"v_mul_f32 {vr(C)}, {sr(inv_reg)}, {vr(C)}")
    a(f"v_sin_f32 {vr(S)}, {vr(C)}")
    a(f"v_cos_f32 {vr(C)}, {vr(C)}")

def gen_tables(a):
    G, N, N2, ROW, COL, IX, C, S = [V_0 + i for i in range(8)]
    O = V_0 + 8
    SB = S_T3
    tab_base(a, SB)
    def flush(off, n):
        for i in range(n):
            a(f"s_add_u32 {sr(S_T0)}, {sr(SB)}, {off + 1024*i}")
            a(f"buffer_store_dwordx4 {vr(O+4*i,4)}, {vr(V_LIN)}, {sr(S_WS,4)}, {sr(S_T0)} offen")
        a("s_waitcnt vmcnt(0)")
    a(f"v_lshrrev_b32 {vr(G)}, 8, {vr(V_LIN)}")
    a(f"v_bfe_u32 {vr(N)}, {vr(V_LIN)}, 4, 4")
    a(f"s_lshl_b32 {sr(S_T0)}, {sr(S_W)}, 4")
    a(f"v_add_u32 {vr(N2)}, {sr(S_T0)}, {vr(N)}")
    def dft(dre, dim, row, col_add, mask):
        a(f"v_lshlrev_b32 {vr(COL)}, 2, {vr(G)}")
        a(f"v_add_u32 {vr(COL)}, {col_add}, {vr(COL)}")
        a(f"v_mul_lo_u32 {vr(IX)}, {vr(row)}, {vr(COL)}")
        for j in range(4):
            sincos(a, C, S, IX, mask, S_C1)
            a(cvt(dre + j, C, S))
            a(f"v_cvt_pk_bf16_f32 {vr(dim + j)}, -{vr(S)}, {vr(C)}")
            if j < 3: a(f"v_add_u32 {vr(IX)}, {vr(IX)}, {vr(row)}")
    a(f"s_mov_b32 {sr(S_C1)}, {hex(f32bits(1/64))}")
    for ks in range(4): dft(O + 4*ks, O + 16 + 4*ks, N2, 16*ks, 63)
    flush(T_A64, 8)
    a(f"s_mov_b32 {sr(S_C1)}, {hex(f32bits(1/32))}")
    for t in range(2):
        a(f"v_add_u32 {vr(ROW)}, {16*t}, {vr(N)}")
        for ks in range(2): dft(O + 8*t + 4*ks, O + 16 + 8*t + 4*ks, ROW, 16*ks, 31)
    flush(T_A32, 8)
    a(f"s_mov_b32 {sr(S_C1)}, {hex(f32bits(1/2048))}")
    for t in range(2):
        a(f"v_lshlrev_b32 {vr(COL)}, 2, {vr(G)}")
        a(f"v_add_u32 {vr(COL)}, {16*t}, {vr(COL)}")
        a(f"v_mul_lo_u32 {vr(IX)}, {vr(COL)}, {vr(N2)}")
        for r in range(4):
            sincos(a, O + 4*t + r, O + 8 + 4*t + r, IX, 0x7ff, S_C1)
            a(f"v_add_u32 {vr(IX)}, {vr(IX)}, {vr(N2)}")
    for t in range(2):
        a(f"v_add_u32 {vr(ROW)}, {16*t}, {vr(N)}")
        a(f"v_lshlrev_b32 {vr(COL)}, 2, {vr(G)}")
        a(f"s_lshl_b32 {sr(S_T0)}, {sr(S_W)}, 4")
        a(f"v_add_u32 {vr(COL)}, {sr(S_T0)}, {vr(COL)}")
        a(f"v_mul_lo_u32 {vr(IX)}, {vr(COL)}, {vr(ROW)}")
        for r in range(4):
            sincos(a, O + 16 + 4*t + r, O + 24 + 4*t + r, IX, 0x7ff, S_C1)
            a(f"v_add_u32 {vr(IX)}, {vr(IX)}, {vr(ROW)}")
    flush(T_TW1, 8)
    a(f"s_mov_b32 {sr(S_C1)}, {hex(f32bits(1/512))}")
    a(f"s_lshl_b32 {sr(S_T0)}, {sr(S_H)}, 4")
    a(f"v_add_u32 {vr(ROW)}, {sr(S_T0)}, {vr(N)}")
    for kq in range(4):
        for jj in range(4):
            a(f"s_lshl_b32 {sr(S_T0)}, {sr(S_W)}, 6")
            a(f"s_add_u32 {sr(S_T0)}, {sr(S_T0)}, {16*kq + jj}")
            a(f"v_lshl_add_u32 {vr(COL)}, {vr(G)}, 2, {sr(S_T0)}")
            if kq == 0 and jj == 0:
                a(f"v_cmp_eq_u32 vcc, 0, {vr(COL)}")
                a(f"v_mov_b32 {vr(IX)}, 0x100")
                a(f"v_cndmask_b32 {vr(COL)}, {vr(COL)}, {vr(IX)}, vcc")
            a(f"v_mul_lo_u32 {vr(IX)}, {vr(COL)}, {vr(ROW)}")
            sincos(a, C, S, IX, 511, S_C1)
            a(f"v_cvt_pk_bf16_f32 {vr(O + 4*kq + jj)}, {vr(C)}, -{vr(S)}")
    flush(T_G, 4)
    SR, SI = S_SRD, S_SRD + 4
    a(f"s_load_dwordx2 {sr(SR,2)}, {sr(S_KARG,2)}, 64")
    a(f"s_load_dwordx2 {sr(SI,2)}, {sr(S_KARG,2)}, 72")
    a("s_waitcnt lgkmcnt(0)")
    for b in (SR, SI):
        a(f"s_mov_b32 {sr(b+2)}, {2048*257*2}"); a(f"s_mov_b32 {sr(b+3)}, 0x20000")
    a(f"v_lshl_add_u32 {vr(IX)}, {vr(G)}, 7, {vr(N)}")
    a(f"v_mul_u32_u24 {vr(IX)}, 514, {vr(IX)}")
    for col, sig in enumerate((S_SIG0, S_SIG1)):
        phi_of(a, S_T1, sig)
        a(f"s_cselect_b32 {sr(S_C2)}, {hex(f32bits(1/(2048*512)))}, 0")
        a(f"s_cmp_eq_u32 {sr(S_C2)}, 0")
        a(f"s_cselect_b32 {sr(S_C2)}, {hex(f32bits(2/(2048*512)))}, {sr(S_C2)}")
        a(f"s_lshl_b32 {sr(S_T1)}, {sr(S_T1)}, 1")
        a(f"s_mul_i32 {sr(S_T2)}, {sr(S_W)}, {16*32*514}")
        a(f"s_add_u32 {sr(S_T1)}, {sr(S_T1)}, {sr(S_T2)}")
        for ct in range(2):
            for r in range(4):
                a(f"s_add_u32 {sr(S_T2)}, {sr(S_T1)}, {(16*ct + 32*r)*514}")
                a(f"buffer_load_ushort {vr(O + 16*col + 4*ct + r)}, {vr(IX)}, {sr(SR,4)}, {sr(S_T2)} offen")
                a(f"buffer_load_ushort {vr(O + 16*col + 8 + 4*ct + r)}, {vr(IX)}, {sr(SI,4)}, {sr(S_T2)} offen")
        a("s_waitcnt vmcnt(0)")
        for i in range(16):
            a(f"v_lshlrev_b32 {vr(O + 16*col + i)}, 16, {vr(O + 16*col + i)}")
            a(f"v_mul_f32 {vr(O + 16*col + i)}, {sr(S_C2)}, {vr(O + 16*col + i)}")
    flush(T_WF, 8)

def fft_fetch(a):
    tab_base(a, S_T3)
    a(f"s_mul_i32 {sr(S_T2)}, {sr(S_W)}, 24576")
    a(f"s_add_u32 {sr(S_T2)}, {sr(S_T2)}, {L_CW}")
    for i in range(24):
        a(f"s_add_u32 m0, {sr(S_T2)}, {1024*i}")
        a(f"s_add_u32 {sr(S_T0)}, {sr(S_T3)}, {1024*i}")
        a(f"buffer_load_dwordx4 {vr(V_LIN)}, {sr(S_WS,4)}, {sr(S_T0)} offen sc1 lds")
    a(f"s_lshl_b32 {sr(S_T1)}, {sr(S_W)}, 11")
    for i in range(2):
        a(f"s_add_u32 {sr(S_T0)}, {sr(S_T1)}, {L_A32 + 1024*i}")
        a(f"s_mov_b32 m0, {sr(S_T0)}")
        a(f"s_add_u32 {sr(S_T0)}, {sr(S_T1)}, {T_A32 + 1024*i}")
        a(f"s_add_u32 {sr(S_T0)}, {sr(S_T0)}, {sr(S_T3)}")
        a(f"buffer_load_dwordx4 {vr(V_LIN)}, {sr(S_WS,4)}, {sr(S_T0)} offen sc1 lds")

def task_fft(a):
    G, N, CW, A1, A2, T, W0 = V_0, V_0+1, V_0+2, V_0+3, V_0+4, V_0+5, V_0+8
    AC, BB, AA, CC = 32, 48, 80, 112
    rd = lambda dst, addr, off: f"ds_read_b128 {vr(dst,4)}, {vr(addr)} offset:{off}"
    a(f"v_lshrrev_b32 {vr(G)}, 8, {vr(V_LIN)}")
    a(f"v_bfe_u32 {vr(N)}, {vr(V_LIN)}, 4, 4")
    a(f"s_mul_i32 {sr(S_T2)}, {sr(S_W)}, 24576")
    a(f"s_add_u32 {sr(S_T2)}, {sr(S_T2)}, {L_CW}")
    a(f"v_add_u32 {vr(CW)}, {sr(S_T2)}, {vr(V_LIN)}")
    a(f"v_add_u32 {vr(T)}, {L_A32}, {vr(V_LIN)}")
    for i in range(8): a(rd(AA + 4*i, T, 1024*i))
    a(f"v_and_b32 {vr(T)}, 7, {vr(N)}")
    a(f"v_xor_b32 {vr(T)}, {vr(T)}, {vr(G)}")
    a(f"v_lshlrev_b32 {vr(T)}, 4, {vr(T)}")
    a(f"v_lshl_add_u32 {vr(T)}, {vr(N)}, 7, {vr(T)}")
    a(f"s_lshl_b32 {sr(S_T0)}, {sr(S_W)}, 11")
    a(f"s_lshl_b32 {sr(S_T1)}, {sr(S_COL)}, 13")
    a(f"s_add_u32 {sr(S_T1)}, {sr(S_T1)}, {sr(S_T0)}")
    a(f"v_add_u32 {vr(A1)}, {sr(S_T1)}, {vr(T)}")
    a(f"v_xor_b32 {vr(A2)}, 64, {vr(A1)}")
    a(rd(BB, A1, L_Z)); a(rd(BB + 4, A2, L_Z))
    for i in range(4): a(rd(CC + 4*i, CW, T_TW1 + 1024*i))
    a(f"s_add_u32 {sr(S_T0)}, {sr(S_T0)}, {L_UT}")
    a(f"v_add_u32 {vr(A1)}, {sr(S_T0)}, {vr(T)}")
    a(f"v_xor_b32 {vr(A2)}, 64, {vr(A1)}")
    a(f"s_lshl_b32 {sr(S_T0)}, {sr(S_W)}, 2")
    a(f"v_lshrrev_b32 {vr(T)}, 2, {vr(N)}")
    a(f"v_add_u32 {vr(T)}, {sr(S_T0)}, {vr(T)}")
    a(f"v_and_b32 {vr(T+1)}, 3, {vr(N)}")
    a(f"v_lshlrev_b32 {vr(T+1)}, 2, {vr(T+1)}")
    a(f"v_lshl_add_u32 {vr(T+1)}, {vr(G)}, 10, {vr(T+1)}")
    a(f"v_add_u32 {vr(T+1)}, {L_T}, {vr(T+1)}")
    for r in range(4):
        a(f"v_lshl_or_b32 {vr(W0+r)}, {vr(G)}, 2, {r}")
        a(f"v_xor_b32 {vr(W0+r)}, {vr(W0+r)}, {vr(T)}")
        a(f"v_lshl_add_u32 {vr(W0+r)}, {vr(W0+r)}, 4, {vr(T+1)}")
    a("s_waitcnt lgkmcnt(4)")
    for c in range(2):
        for t in range(2):
            for ks in range(2):
                a(m16(AC + 8*c + 4*t, AA + 16*c + 8*t + 4*ks, BB + 4*ks, "0" if ks == 0 else AC + 8*c + 4*t))
    for i in range(8): a(rd(AA + 4*i, CW, T_A64 + 1024*i))
    a("s_waitcnt lgkmcnt(8)")
    def tw(out):
        for e in range(8):
            re, im, c, s_ = AC + e, AC + 8 + e, CC + e, CC + 8 + e
            a(f"v_mul_f32 {vr(T)}, {vr(re)}, {vr(c)}")
            a(f"v_mul_f32 {vr(T+1)}, {vr(im)}, {vr(c)}")
            a(f"v_fmac_f32 {vr(T)}, {vr(im)}, {vr(s_)}")
            a(f"v_fma_f32 {vr(T+1)}, -{vr(re)}, {vr(s_)}, {vr(T+1)}")
            a(cvt(out + e, T, T + 1))
    tw(BB)
    for t in range(2):
        for r in range(4): a(f"ds_write_b32 {vr(W0+r)}, {vr(BB+4*t+r)} offset:{4096*t + 256*r}")
    a(f"s_lshl_b32 {sr(S_T0)}, {sr(S_COL)}, 12")
    a(f"v_add_u32 {vr(T)}, {sr(S_T0)}, {vr(CW)}")
    for i in range(4): a(rd(CC + 4*i, T, T_WF + 1024*i))
    for ks in range(4):
        a(f"v_or_b32 {vr(W0+ks)}, {4*ks}, {vr(G)}")
        a(f"v_xor_b32 {vr(W0+ks)}, {vr(W0+ks)}, {vr(N)}")
        a(f"v_lshlrev_b32 {vr(W0+ks)}, 4, {vr(W0+ks)}")
        a(f"v_lshl_add_u32 {vr(W0+ks)}, {vr(N)}, 8, {vr(W0+ks)}")
        a(f"v_add_u32 {vr(W0+ks)}, {L_T}, {vr(W0+ks)}")
    a("s_waitcnt lgkmcnt(0)")
    a("s_barrier")
    for ct in range(2):
        for ks in range(4): a(rd(BB + 16*ct + 4*ks, W0 + ks, 4096*ct))
    def stage64():
        for ct in range(2):
            for ks in range(4):
                a(f"s_waitcnt lgkmcnt({7 - 4*ct - ks})")
                for c in range(2):
                    a(m16(AC + 8*c + 4*ct, AA + 16*c + 4*ks, BB + 16*ct + 4*ks, "0" if ks == 0 else AC + 8*c + 4*ct))
    stage64()
    for e in range(8):
        xr, xi, wr, wi = AC + e, AC + 8 + e, CC + e, CC + 8 + e
        a(f"v_mul_f32 {vr(T)}, {vr(xr)}, {vr(wr)}")
        a(f"v_mul_f32 {vr(T+1)}, {vr(xr)}, {vr(wi)}")
        a(f"v_fma_f32 {vr(T)}, -{vr(xi)}, {vr(wi)}, {vr(T)}")
        a(f"v_fmac_f32 {vr(T+1)}, {vr(xi)}, {vr(wr)}")
        a(f"v_cvt_pk_bf16_f32 {vr(BB + e)}, {vr(T)}, -{vr(T+1)}")
    a(f"s_lshl_b32 {sr(S_T0)}, {sr(S_W)}, 10")
    a(f"s_add_u32 {sr(S_T0)}, {sr(S_T0)}, {L_YB}")
    a(f"v_add_u32 {vr(T)}, {sr(S_T0)}, {vr(V_LIN)}")
    a(f"ds_write_b128 {vr(T)}, {vr(BB,4)}")
    a(f"ds_write_b128 {vr(T)}, {vr(BB+4,4)} offset:4096")
    for i in range(4): a(rd(CC + 4*i, CW, T_TW2 + 1024*i))
    a(f"v_add_u32 {vr(T)}, {L_YB}, {vr(V_LIN)}")
    a(f"s_lshl_b32 {sr(S_T0)}, {sr(S_W)}, 11")
    a(f"s_add_u32 {sr(S_T0)}, {sr(S_T0)}, {L_UT}")
    a(f"v_and_b32 {vr(T+1)}, 3, {vr(N)}")
    a(f"v_lshlrev_b32 {vr(T+1)}, 2, {vr(T+1)}")
    a(f"v_lshl_add_u32 {vr(T+1)}, {vr(G)}, 9, {vr(T+1)}")
    a(f"v_add_u32 {vr(T+1)}, {sr(S_T0)}, {vr(T+1)}")
    a(f"v_lshrrev_b32 {vr(T+2)}, 2, {vr(N)}")
    for r in range(4):
        a(f"v_lshl_or_b32 {vr(W0+r)}, {vr(G)}, 2, {r}")
        a(f"v_and_b32 {vr(W0+r)}, 7, {vr(W0+r)}")
        a(f"v_xor_b32 {vr(W0+r)}, {vr(W0+r)}, {vr(T+2)}")
        a(f"v_lshl_add_u32 {vr(W0+r)}, {vr(W0+r)}, 4, {vr(T+1)}")
    a("s_waitcnt lgkmcnt(0)")
    a("s_barrier")
    for ct in range(2):
        for ks in range(4): a(rd(BB + 16*ct + 4*ks, T, 4096*ct + 1024*ks))
    stage64()
    a(f"v_add_u32 {vr(T+2)}, {L_A32}, {vr(V_LIN)}")
    for i in range(8): a(rd(AA + 4*i, T + 2, 1024*i))
    tw(BB)
    for r in range(4):
        a(f"ds_write_b32 {vr(W0+r)}, {vr(BB+r)} offset:{128*r}")
        a(f"v_xor_b32 {vr(W0+r)}, 64, {vr(W0+r)}")
        a(f"ds_write_b32 {vr(W0+r)}, {vr(BB+4+r)} offset:{128*r}")
    a(rd(BB + 8, A1, 0)); a(rd(BB + 12, A2, 0))
    a(f"s_lshl_b32 {sr(S_T0)}, {sr(S_W)}, 5")
    a(f"s_add_u32 {sr(S_T0)}, {sr(S_T0)}, {L_PL}")
    a(f"v_lshlrev_b32 {vr(T)}, 7, {vr(N)}")
    a(f"v_lshl_add_u32 {vr(T)}, {vr(G)}, 3, {vr(T)}")
    a(f"v_add_u32 {vr(T)}, {sr(S_T0)}, {vr(T)}")
    a("s_waitcnt lgkmcnt(0)")
    for c in range(2):
        for t in range(2):
            for ks in range(2):
                a(m16(AC + 8*c + 4*t, BB + 8 + 4*ks, AA + 16*c + 8*t + 4*ks, "0" if ks == 0 else AC + 8*c + 4*t))
    for c in range(2):
        ng = "-" if c else ""
        for t in range(2):
            b = AC + 8*c + 4*t
            a(f"v_cvt_pk_bf16_f32 {vr(b)}, {ng}{vr(b)}, {ng}{vr(b+1)}")
            a(f"v_cvt_pk_bf16_f32 {vr(b+1)}, {ng}{vr(b+2)}, {ng}{vr(b+3)}")
            a(f"ds_write_b64 {vr(T)}, {vr(b,2)} offset:{4096*c + 2048*t}")
    a(f"s_lshl_b32 {sr(S_T0)}, {sr(S_W)}, 11")
    a(f"s_add_u32 {sr(S_T1)}, {sr(S_T0)}, {L_PL}")
    a(f"v_add_u32 {vr(T)}, {sr(S_T1)}, {vr(V_LIN)}")
    a("s_waitcnt lgkmcnt(0)")
    a("s_barrier")
    a(rd(BB, T, 0)); a(rd(BB + 4, T, 1024))
    a(f"s_cmp_eq_u32 {sr(S_COL)}, 0")
    a(f"s_cselect_b32 {sr(S_T2)}, {sr(S_SIG0)}, {sr(S_SIG1)}")
    a(f"s_lshl_b32 {sr(S_T1)}, {sr(S_L)}, 8")
    a(f"s_add_u32 {sr(S_T2)}, {sr(S_T2)}, {sr(S_T1)}")
    a(f"s_lshl_b32 {sr(S_T1)}, {sr(S_T2)}, 13")
    a(f"s_add_u32 {sr(S_T1)}, {sr(S_T1)}, {sr(S_T0)}")
    a(f"s_add_u32 {sr(S_T1)}, {sr(S_T1)}, {OFF_YF}")
    a("s_waitcnt lgkmcnt(0)")
    a(f"buffer_store_dwordx4 {vr(BB,4)}, {vr(V_LIN)}, {sr(S_WS,4)}, {sr(S_T1)} offen sc1")
    a(f"buffer_store_dwordx4 {vr(BB+4,4)}, {vr(V_LIN)}, {sr(S_WS,4)}, {sr(S_T1)} offen offset:1024 sc1")
    a(f"s_lshl_b32 {sr(S_T0)}, {sr(S_T2)}, 2")
    a(f"s_add_u32 {sr(S_T0)}, {sr(S_T0)}, {FL_Y}")
    set_flag(a, S_T0, False)

GA = 112
def wait_y(a, lay):
    lab = a.newlabel("L_wy")
    a(f"s_lshl_b32 {sr(S_T0)}, {sr(lay)}, 10")
    a(f"s_add_u32 {sr(S_T0)}, {sr(S_T0)}, {FL_Y}")
    a.label(lab)
    a(f"buffer_load_dwordx4 {vr(V_0,4)}, {vr(V_LIN)}, {sr(S_WS,4)}, {sr(S_T0)} offen sc1")
    a("s_waitcnt vmcnt(0)")
    a(f"v_min_u32 {vr(V_0)}, {vr(V_0)}, {vr(V_0+1)}")
    a(f"v_min3_u32 {vr(V_0)}, {vr(V_0)}, {vr(V_0+2)}, {vr(V_0+3)}")
    a(f"v_cmp_eq_u32 vcc, 0, {vr(V_0)}")
    a(f"s_cbranch_vccz {lab}_ok")
    timeout(a)
    a("s_sleep 1")
    a(f"s_branch {lab}")
    a.label(lab + "_ok")

def task_idft(a):
    L, T1, SRC, TR, XA, RA = V_0, V_0+1, V_0+2, V_0+3, V_0+4, V_0+5
    BB, AC, RES = V_0 + 8, V_0 + 40, V_0 + 48
    a(f"v_lshrrev_b32 {vr(L)}, 4, {vr(V_LIN)}")
    a(f"v_lshrrev_b32 {vr(T1)}, 2, {vr(L)}")
    a(f"v_lshlrev_b32 {vr(SRC)}, 12, {vr(T1)}")
    a(f"v_and_b32 {vr(T1)}, 3, {vr(L)}")
    a(f"v_lshl_add_u32 {vr(SRC)}, {vr(T1)}, 4, {vr(SRC)}")
    a(f"s_lshl_b32 {sr(S_T0)}, {sr(S_RET)}, 2")
    a(f"s_add_u32 {sr(S_T0)}, {sr(S_T0)}, {sr(S_W)}")
    a(f"s_lshl_b32 {sr(S_T0)}, {sr(S_T0)}, 19")
    a(f"s_lshl_b32 {sr(S_T1)}, {sr(S_DSEG)}, 6")
    a(f"s_add_u32 {sr(S_T0)}, {sr(S_T0)}, {sr(S_T1)}")
    a(f"s_add_u32 {sr(S_T0)}, {sr(S_T0)}, {OFF_YF}")
    for i in range(8):
        a(f"s_add_u32 m0, {sr(S_LU)}, {1024*i}")
        a(f"buffer_load_dwordx4 {vr(SRC)}, {sr(S_WS,4)}, {sr(S_T0)} offen sc1 lds")
        if i < 7: a(f"s_add_u32 {sr(S_T0)}, {sr(S_T0)}, 65536")
    tab_base(a, S_T2)
    a(f"s_add_u32 {sr(S_T2)}, {sr(S_T2)}, {T_G}")
    for kq in range(4): a(f"buffer_load_dwordx4 {vr(GA+4*kq,4)}, {vr(V_LIN)}, {sr(S_WS,4)}, {sr(S_T2)} offen offset:{1024*kq} sc1")
    a(f"v_lshrrev_b32 {vr(XA)}, 3, {vr(L)}")
    a(f"v_lshlrev_b32 {vr(XA)}, 10, {vr(XA)}")
    a(f"v_and_b32 {vr(RA)}, 7, {vr(L)}")
    a(f"v_lshl_add_u32 {vr(XA)}, {vr(RA)}, 2, {vr(XA)}")
    a(f"s_lshl_b32 {sr(S_T1)}, {sr(S_W)}, 13")
    a(f"s_lshl_b32 {sr(S_T2)}, {sr(S_H)}, 5")
    a(f"s_add_u32 {sr(S_T1)}, {sr(S_T1)}, {sr(S_T2)}")
    a(f"v_add_u32 {vr(XA)}, {sr(S_T1)}, {vr(XA)}")
    a(f"s_lshl_b32 {sr(S_T1)}, {sr(S_RET)}, 6")
    a(f"s_add_u32 {sr(S_T1)}, {sr(S_T1)}, {sr(S_DSEG)}")
    a(f"s_lshl_b32 {sr(S_T1)}, {sr(S_T1)}, 15")
    a(f"s_add_u32 {sr(S_T1)}, {sr(S_T1)}, {OFF_X1}")
    a(f"buffer_load_dword {vr(RES)}, {vr(XA)}, {sr(S_WS,4)}, {sr(S_T1)} offen sc1")
    a(f"v_lshrrev_b32 {vr(TR)}, 4, {vr(L)}")
    a(f"v_lshlrev_b32 {vr(TR)}, 9, {vr(TR)}")
    a(f"v_bfe_u32 {vr(T1)}, {vr(L)}, 2, 2")
    a(f"v_lshl_add_u32 {vr(TR)}, {vr(T1)}, 6, {vr(TR)}")
    a(f"v_and_b32 {vr(T1)}, 3, {vr(L)}")
    a(f"v_lshl_add_u32 {vr(TR)}, {vr(T1)}, 3, {vr(TR)}")
    a(f"v_add_u32 {vr(TR)}, {sr(S_LU)}, {vr(TR)}")
    a(f"v_lshrrev_b32 {vr(T1)}, 1, {vr(RA)}")
    a(f"v_lshlrev_b32 {vr(T1)}, 8, {vr(T1)}")
    a(f"v_and_b32 {vr(RA)}, 1, {vr(RA)}")
    a(f"v_lshl_add_u32 {vr(T1)}, {vr(RA)}, 3, {vr(T1)}")
    a(f"v_lshrrev_b32 {vr(RA)}, 3, {vr(L)}")
    a(f"v_lshl_add_u32 {vr(RA)}, {vr(RA)}, 4, {vr(T1)}")
    a(f"s_lshr_b32 {sr(S_T1)}, {sr(S_W)}, 1")
    a(f"s_lshl_b32 {sr(S_T1)}, {sr(S_T1)}, 10")
    a(f"s_and_b32 {sr(S_T2)}, {sr(S_W)}, 1")
    a(f"s_lshl_b32 {sr(S_T2)}, {sr(S_T2)}, 7")
    a(f"s_add_u32 {sr(S_T1)}, {sr(S_T1)}, {sr(S_T2)}")
    a(f"s_add_u32 {sr(S_T1)}, {sr(S_T1)}, {L_EX}")
    a(f"v_add_u32 {vr(RA)}, {sr(S_T1)}, {vr(RA)}")
    a(f"s_lshl_b32 {sr(S_T1)}, {sr(S_W)}, 11")
    a(f"s_add_u32 {sr(S_T1)}, {sr(S_T1)}, {L_EX}")
    a(f"v_add_u32 {vr(T1)}, {sr(S_T1)}, {vr(V_LIN)}")
    a("s_waitcnt vmcnt(5)")
    for tt in range(2):
        for kq in range(4):
            for x in range(2):
                a(f"ds_read_b64_tr_b16 {vr(BB + 16*tt + 4*kq + 2*x, 2)}, {vr(TR)} offset:{2048*kq + 256*x + 32*tt}")
    a("s_waitcnt vmcnt(1)")
    for tt in range(2):
        a(f"s_waitcnt lgkmcnt({8 - 8*tt})")
        for kq in range(4): a(m16(AC + 4*tt, GA + 4*kq, BB + 16*tt + 4*kq, "0" if kq == 0 else AC + 4*tt))
    a(f"ds_write_b128 {vr(T1)}, {vr(AC,4)}")
    a(f"ds_write_b128 {vr(T1)}, {vr(AC+4,4)} offset:1024")
    a("s_waitcnt lgkmcnt(0)")
    a("s_barrier")
    for w in range(4): a(f"ds_read_b64 {vr(BB+2*w,2)}, {vr(RA)} offset:{2048*w}")
    a("s_waitcnt vmcnt(0) lgkmcnt(0)")
    for c in range(2):
        a(f"v_add_f32 {vr(BB+c)}, {vr(BB+c)}, {vr(BB+2+c)}")
        a(f"v_add_f32 {vr(BB+4+c)}, {vr(BB+4+c)}, {vr(BB+6+c)}")
    for c in range(2): a(f"v_add_f32 {vr(BB+c)}, {vr(BB+c)}, {vr(BB+4+c)}")
    a(cvt(BB, BB, BB + 1))
    a(f"v_lshlrev_b32 {vr(BB+2)}, 16, {vr(BB)}"); a(f"v_and_b32 {vr(BB+3)}, 0xffff0000, {vr(BB)}")
    a(f"v_lshlrev_b32 {vr(BB+4)}, 16, {vr(RES)}"); a(f"v_and_b32 {vr(BB+5)}, 0xffff0000, {vr(RES)}")
    a(f"v_add_f32 {vr(BB+2)}, {vr(BB+2)}, {vr(BB+4)}"); a(f"v_add_f32 {vr(BB+3)}, {vr(BB+3)}, {vr(BB+5)}")
    a(cvt(BB, BB + 2, BB + 3))
    lab = a.newlabel("L_id")
    a(f"s_lshl_b32 {sr(S_T1)}, {sr(S_DSEG)}, 15")
    a(f"s_cmp_eq_u32 {sr(S_RET)}, 0")
    a(f"s_cbranch_scc1 {lab}_x2")
    a(f"buffer_store_dword {vr(BB)}, {vr(XA)}, {sr(S_OUT,4)}, {sr(S_T1)} offen")
    a("s_barrier")
    a(f"s_branch {lab}_e")
    a.label(lab + "_x2")
    a(f"s_add_u32 {sr(S_T1)}, {sr(S_T1)}, {OFF_X2}")
    xstore(a, [f"buffer_store_dword {vr(BB)}, {vr(XA)}, {sr(S_WS,4)}, {sr(S_T1)} offen"])
    own_flag(a, S_T0, FL_X2, seg=S_DSEG, layer=False)
    set_flag(a, S_T0, True)
    a.label(lab + "_e")

def program(a, wait_start):
    prologue(a)
    if LOG:
        a(f"s_lshl_b32 {sr(S_LOGP)}, {sr(S_SIG0)}, 13")
        a(f"s_add_u32 {sr(S_LOGP)}, {sr(S_LOGP)}, {OFF_LOG}")
    log(a, 1)
    load_chunks(a, [("K", p) for p in range(8)] + [("V", p) for p in range(8)])
    wait_start(a)
    log(a, 2)
    a(f"s_mov_b32 {sr(S_L)}, 0")
    a.label("W_layer")
    a(f"s_mov_b32 {sr(S_SEG)}, {sr(S_R)}")
    a(f"s_mov_b32 {sr(S_DSEG)}, {sr(S_R)}")
    a(f"s_mov_b32 {sr(S_RET)}, 0")
    a(f"s_mov_b32 {sr(S_POS)}, 0")
    a(f"s_cmp_eq_u32 {sr(S_L)}, 0")
    a("s_cbranch_scc1 W_A")
    wait_y(a, S_RET)
    log(a, 6)
    a.label("W_idft")
    task_idft(a)
    log(a, 10)
    a(f"s_add_u32 {sr(S_DSEG)}, {sr(S_DSEG)}, 7")
    a(f"s_cmp_eq_u32 {sr(S_POS)}, 1")
    a("s_cbranch_scc1 W_kv")
    a(f"s_cmp_eq_u32 {sr(S_POS)}, 2")
    a("s_cbranch_scc1 W_fin")
    a.label("W_A")
    task_row(a, False)
    log(a, 11)
    a(f"s_mov_b32 {sr(S_POS)}, 1")
    a(f"s_cmp_eq_u32 {sr(S_L)}, 0")
    a("s_cbranch_scc1 W_kv")
    a(f"s_cmp_lt_u32 {sr(S_DSEG)}, 64")
    a("s_cbranch_scc1 W_idft")
    a.label("W_kv")
    task_kv(a)
    log(a, 12)
    a(f"s_add_u32 {sr(S_SEG)}, {sr(S_SEG)}, 7")
    a(f"s_cmp_lt_u32 {sr(S_SEG)}, 64")
    a("s_cbranch_scc1 W_A")
    a(f"s_cmp_eq_u32 {sr(S_L)}, 0")
    a("s_cbranch_scc0 W_q2")
    load_chunks(a, [("O", p) for p in range(8)])
    log(a, 3)
    gen_F(a)
    gen_tables(a)
    log(a, 4)
    a.label("W_q2")
    load_chunks(a, [("Q", p) for p in range(8)], reload_srd=True)
    a("s_barrier")
    log(a, 5)
    a(f"s_mov_b32 {sr(S_POS)}, 0")
    a(f"s_mov_b32 {sr(S_SEG)}, {sr(S_R)}")
    a.label("W_C")
    a(f"s_cmp_lt_u32 {sr(S_POS)}, 3")
    a("s_cbranch_scc1 W_C1")
    a(f"s_sub_u32 {sr(S_DSEG)}, {sr(S_POS)}, 3")
    task_dftd(a)
    log(a, 13)
    a.label("W_C1")
    a(f"s_cmp_eq_u32 {sr(S_POS)}, {sr(S_SEG)}")
    a("s_cbranch_scc0 W_C2")
    task_att(a)
    log(a, 14)
    a(f"s_add_u32 {sr(S_T0)}, {sr(S_SEG)}, 7")
    a(f"s_cmp_lt_u32 {sr(S_T0)}, 64")
    a("s_cbranch_scc1 W_C3")
    fft_fetch(a)
    a.label("W_C3")
    task_row(a, True)
    log(a, 15)
    a(f"s_add_u32 {sr(S_SEG)}, {sr(S_SEG)}, 7")
    a(f"s_cmp_lt_u32 {sr(S_SEG)}, 64")
    a(f"s_cselect_b32 {sr(S_SEG)}, {sr(S_SEG)}, 0x7f")
    a.label("W_C2")
    a(f"s_add_u32 {sr(S_POS)}, {sr(S_POS)}, 1")
    a(f"s_cmp_lt_u32 {sr(S_POS)}, 67")
    a("s_cbranch_scc1 W_C")
    a("s_barrier")
    a(f"s_mov_b32 {sr(S_COL)}, 0")
    a.label("W_D")
    task_fft(a)
    log(a, 16)
    a(f"s_add_u32 {sr(S_COL)}, {sr(S_COL)}, 1")
    a(f"s_cmp_lt_u32 {sr(S_COL)}, {sr(S_NCOL)}")
    a("s_cbranch_scc1 W_D")
    a(f"s_add_u32 {sr(S_L)}, {sr(S_L)}, 1")
    a(f"s_cmp_lt_u32 {sr(S_L)}, 2")
    a("s_cbranch_scc1 W_layer")
    a(f"s_mov_b32 {sr(S_RET)}, 1")
    a(f"s_mov_b32 {sr(S_POS)}, 2")
    a(f"s_mov_b32 {sr(S_DSEG)}, {sr(S_R)}")
    wait_y(a, S_RET)
    log(a, 6)
    a("s_branch W_idft")
    a.label("W_fin")
    a(f"s_cmp_lt_u32 {sr(S_DSEG)}, 64")
    a("s_cbranch_scc1 W_idft")
```

```python
import sys, json
from asmlib import *
from layout import *
import chain as C
import worker as Wk

REF = open('interleave_layers__memory_aug_recurrent_mem_tr__spectral_gfnet__prompt.s.ref').read()
HEAD = REF.split("; Override")[0]
NAME = "interleave_layers__memory_aug_recurrent_mem_tr__spectral_gfnet__prompt_kernel"
S_DBG = 96
S_VX = 98
S_SAFE_G = 99
LDS_TMP = 28672

def roles(a, force_safe=False):
    a("s_cmp_ge_u32 s2, 256"); a("s_cbranch_scc1 L_end")
    a("s_load_dwordx2 s[8:9], s[0:1], 96")
    a(f"s_load_dwordx2 {sr(S_DBG,2)}, s[0:1], 88")
    a(f"s_getreg_b32 {sr(S_VX)}, hwreg(HW_REG_XCC_ID)")
    a(f"s_and_b32 {sr(S_VX)}, {sr(S_VX)}, 7")
    a("v_lshrrev_b32 v1, 6, v0")
    a("v_readfirstlane_b32 s4, v1")
    a("s_mov_b32 s39, 0")
    a("s_waitcnt lgkmcnt(0)")
    a("s_mov_b32 s10, 0x10000000"); a("s_mov_b32 s11, 0x20000")
    a("s_cmp_eq_u32 s4, 0"); a("s_cbranch_scc0 L_r1")
    for i in range(4): a(f"v_mov_b32 v{4+i}, 0")
    a("s_mul_i32 s3, s2, 384"); a(f"s_add_u32 s3, s3, {OFF_FLAG}")
    a("v_lshlrev_b32 v2, 4, v0")
    a("s_mov_b64 exec, 0xffffff")
    a("buffer_store_dwordx4 v[4:7], v2, s[8:11], s3 offen sc1")
    a("s_mov_b64 exec, 1")
    a(f"s_lshl_b32 s3, {sr(S_VX)}, 2")
    a("v_mov_b32 v2, s3"); a("v_mov_b32 v3, 1")
    a(f"global_atomic_add v4, v2, v3, {sr(S_DBG,2)} sc0")
    a("s_waitcnt vmcnt(0)")
    a("v_readfirstlane_b32 s5, v4")
    a("s_cmp_lt_u32 s5, 32"); a("s_cbranch_scc1 L_r0")
    a("s_mov_b64 exec, 0xff")
    a("v_lshlrev_b32 v2, 2, v0")
    a.label("L_ov")
    a(f"global_load_dword v4, v2, {sr(S_DBG,2)} sc1")
    a("s_waitcnt vmcnt(0)")
    a("s_mov_b32 s3, 0")
    for x in range(8):
        a(f"v_readlane_b32 s{64+x}, v4, {x}")
        a(f"s_add_u32 s3, s3, s{64+x}")
    a("s_add_u32 s39, s39, 1"); a("s_cmp_gt_u32 s39, 0x400000"); a("s_cbranch_scc1 L_abort")
    a("s_cmp_lt_u32 s3, 256"); a("s_cbranch_scc1 L_ov")
    a("s_mov_b64 exec, 1")
    a("v_mov_b32 v2, 36")
    a(f"global_atomic_add v4, v2, v3, {sr(S_DBG,2)} sc0")
    a("s_waitcnt vmcnt(0)")
    a("v_readfirstlane_b32 s3, v4")
    for x in range(8):
        a(f"s_min_u32 s6, s{64+x}, 32")
        a(f"s_add_u32 s5, s6, s3")
        a(f"s_mov_b32 {sr(S_VX)}, {x}")
        a("s_cmp_lt_u32 s5, 32"); a("s_cbranch_scc1 L_r0")
        a("s_sub_u32 s3, s5, 32")
    a("s_branch L_abort")
    a.label("L_r0")
    a("s_mov_b64 exec, 1")
    a(f"s_lshl_b32 s3, {sr(S_VX)}, 8"); a("s_or_b32 s3, s3, s5")
    a("v_mov_b32 v4, s3"); a(f"v_mov_b32 v2, {LDS_TMP}")
    a("ds_write_b32 v2, v4"); a("s_waitcnt lgkmcnt(0)")
    a("s_mov_b64 exec, -1")
    a.label("L_r1")
    a("s_barrier")
    a(f"v_mov_b32 v2, {LDS_TMP}")
    a("ds_read_b32 v4, v2"); a("s_waitcnt lgkmcnt(0)")
    a("v_readfirstlane_b32 s3, v4")
    a("s_and_b32 s5, s3, 31"); a(f"s_lshr_b32 {sr(S_VX)}, s3, 8"); a(f"s_and_b32 {sr(S_VX)}, {sr(S_VX)}, 7")
    a("s_barrier")

def arrive(a, va, vb):
    lab = a.newlabel("L_ar")
    a("s_waitcnt vmcnt(0)"); a("s_barrier")
    a("s_cmp_eq_u32 s4, 0"); a(f"s_cbranch_scc0 {lab}")
    a(f"v_mov_b32 v{va}, 32"); a(f"v_mov_b32 v{vb}, 1"); a("s_mov_b64 exec, 1")
    a(f"global_atomic_add v{va}, v{vb}, {sr(S_DBG,2)}")
    a("s_mov_b64 exec, -1")
    a.label(lab)

def wait_start(a, va, vb, vlin, need, force_safe):
    lab = a.newlabel("L_ws")
    a(f"v_lshrrev_b32 v{va}, 2, v{vlin}"); a(f"v_and_b32 v{va}, 60, v{va}")
    a.label(lab)
    a(f"global_load_dword v{vb}, v{va}, {sr(S_DBG,2)} sc1")
    a("s_waitcnt vmcnt(0)")
    a(f"v_readlane_b32 s3, v{vb}, 8")
    a("s_add_u32 s39, s39, 1"); a("s_cmp_gt_u32 s39, 0x400000"); a("s_cbranch_scc1 L_abort")
    a(f"s_cmp_lt_u32 s3, {need}"); a(f"s_cbranch_scc1 {lab}")
    a(f"v_cmp_ne_u32 vcc, 32, v{vb}")
    a("s_and_b32 s3, vcc_lo, 0xff")
    a(f"s_cselect_b32 {sr(S_SAFE_G)}, 1, 0")
    if force_safe: a(f"s_mov_b32 {sr(S_SAFE_G)}, 1")

def gen(mode="full", force_safe=False, cp=None, wdbg=False):
    cp = cp or dict(d1=160, d2=160, p2mode=1, g2=120)
    a = Asm()
    C.STAMPS.clear()
    Wk.LOG = wdbg
    roles(a)
    need = 256
    a(f"s_cmp_eq_u32 {sr(S_VX)}, 0")
    a("s_cbranch_scc0 L_worker")
    if mode == "workers":
        a("v_and_b32 v1, 63, v0"); a("v_lshlrev_b32 v1, 4, v1")
        arrive(a, 120, 121)
        wait_start(a, 120, 121, 1, need, force_safe)
        a("s_lshl_b32 s3, s5, 7"); a(f"s_add_u32 s3, s3, {F_KM}")
        a("v_mov_b32 v2, 64"); a("v_mov_b32 v3, 0")
        a("buffer_store_dword v2, v3, s[8:11], s3 offen sc1")
        a("s_add_u32 s3, s3, 4096")
        a("buffer_store_dword v2, v3, s[8:11], s3 offen sc1")
        a("s_branch L_abort")
    else:
        C.prologue(a)
        arrive(a, 120, 121)
        C.load_weights(a)
        wait_start(a, 120, 121, C.V_LIN, need, force_safe)
        a(f"s_mov_b32 {sr(C.S_PAR)}, 1")
        a(f"s_mov_b32 {sr(C.S_LAYER)}, 0")
        a.label("L_layer")
        C.layer_start(a)
        a(f"s_cmp_eq_u32 {sr(S_SAFE_G)}, 0")
        a("s_cbranch_scc0 L_step_s")
        a.label("L_step_f")
        C.step(a, "", tag="_f", **cp)
        a(f"s_cmp_lt_u32 {sr(C.S_STEP)}, 63"); a("s_cbranch_scc1 L_step_f")
        a("s_branch L_tail")
        a.label("L_step_s")
        C.step(a, "sc1", tag="_s", d1=400, d2=400, p2mode=0)
        a(f"s_cmp_lt_u32 {sr(C.S_STEP)}, 63"); a("s_cbranch_scc1 L_step_s")
        a.label("L_tail")
        C.tail(a)
        a(f"s_add_u32 {sr(C.S_LAYER)}, {sr(C.S_LAYER)}, 1")
        a(f"s_cmp_lt_u32 {sr(C.S_LAYER)}, 2"); a("s_cbranch_scc1 L_layer")
        a("s_branch L_end")
        C.flush_out()
    a.label("L_worker")
    if mode == "chain":
        a("s_branch L_end")
    else:
        a(f"s_sub_u32 {sr(Wk.S_R)}, {sr(S_VX)}, 1")
        arrive(a, 120, 121)
        def ws_(a):
            wait_start(a, 120, 121, Wk.V_LIN, need, force_safe)
            a(f"s_mov_b32 {sr(Wk.S_SAFE)}, {sr(S_SAFE_G)}")
        Wk.program(a, ws_)
    a.label("L_abort")
    a("s_waitcnt vmcnt(0)")
    a.label("L_end")
    lines = pad_hazards(a.lines)
    txt = HEAD + f"; @launch grid=(256,1,1) block=(256,1,1) lds=163840\n" + '.amdgcn_target "amdgcn-amd-amdhsa--gfx950"\n.text\n' + f".globl {NAME}\n.p2align 8\n.type {NAME},@function\n{NAME}:\n" + "\n".join(lines) + "\ns_endpgm\n"
    txt += f""".section .rodata,"a"
.p2align 6
.amdhsa_kernel {NAME}
  .amdhsa_next_free_vgpr 512
  .amdhsa_next_free_sgpr 102
  .amdhsa_accum_offset 256
  .amdhsa_group_segment_fixed_size 0
  .amdhsa_kernarg_size 104
  .amdhsa_user_sgpr_count 2
  .amdhsa_user_sgpr_kernarg_segment_ptr 1
  .amdhsa_system_sgpr_workgroup_id_x 1
.end_amdhsa_kernel
"""
    return txt
if __name__ == "__main__":
    open("k_workers.s", "w").write(gen("workers"))
    open("k_workers_log.s", "w").write(gen("workers", wdbg=True))
    open("k_full_log.s", "w").write(gen("full", wdbg=True))
    open("k_full.s", "w").write(gen("full"))
```
